```python
import torch

def _softmax(x, axis=-1):
    return torch.softmax(x, dim=axis)
def _gelu(x):
    return torch.nn.functional.gelu(x, approximate="tanh")
def _silu(x):
    return torch.nn.functional.silu(x)
def _sigmoid(x):
    return torch.sigmoid(x)
def _layernorm(x, axis=-1, eps=1e-5):
    m = x.mean(dim=axis, keepdim=True)
    v = x.var(dim=axis, keepdim=True, unbiased=False)
    return (x - m) / torch.sqrt(v + eps)
def _scatter_add(tgt, idx, src, axis=0):
    return tgt.clone().index_add_(axis, idx, src)
def _segment_sum(src, seg, n):
    out = torch.zeros((n,) + src.shape[1:], dtype=src.dtype)
    return out.index_add_(0, seg, src)
def _pad(x, pw):
    flat = tuple(v for pair in reversed(pw) for v in pair)
    return torch.nn.functional.pad(x, flat)

kernel_name = 'gated_mix__ssm_conv_h3__sliding_local_dilated__prompt'

def setup_inputs():

    _w = (lambda a: (lambda t: t.to(torch.bfloat16) if t.is_floating_point() else t)(torch.as_tensor(a)))
    def _A_setup():
        B, S, D = 1, 2048, 640
        ks = 4
        return {
            "q": _w((lambda *s: torch.randn(*s, dtype=torch.bfloat16) * 0.05)(B, S, D)),
            "k": _w((lambda *s: torch.randn(*s, dtype=torch.bfloat16) * 0.8)(B, S, D)),
            "v": _w((lambda *s: torch.randn(*s, dtype=torch.bfloat16) * 0.8)(B, S, D)),
            "shift_k": _w((lambda *s: torch.randn(*s, dtype=torch.bfloat16) * 0.8)(D, ks) * 0.5),
            "ssm_k": _w((lambda *s: torch.randn(*s, dtype=torch.bfloat16) * 3.2)(D, S) * (1.0 / S ** 0.5)),
            "ssm_D": _w((lambda *s: torch.randn(*s, dtype=torch.bfloat16) * 0.8)(D)),
        }
    _A_in = _A_setup()

    def _B_setup():
        B, S, D = 1, 2048, 640
        return {
            "x": _w((lambda *s: torch.randn(*s, dtype=torch.bfloat16) * 0.05)(B, S, D)),
            "wqkv": _w((lambda *s: torch.randn(*s, dtype=torch.bfloat16) * 0.8)(D, 3 * D)),
            "wo": _w((lambda *s: torch.randn(*s, dtype=torch.bfloat16) * 0.05)(D, D)),
        }
    _B_in = _B_setup()

    return {
        "A_q": _A_in["q"],
        "A_k": _A_in["k"],
        "A_v": _A_in["v"],
        "A_shift_k": _A_in["shift_k"],
        "A_ssm_k": _A_in["ssm_k"],
        "A_ssm_D": _A_in["ssm_D"],
        "B_x": _B_in["x"],
        "B_wqkv": _B_in["wqkv"],
        "B_wo": _B_in["wo"],
        "gate_w": _w((lambda *s: torch.randn(*s, dtype=torch.bfloat16) * 0.05)(640) * 16.0),
    }

def reference(A_q, A_k, A_v, A_shift_k, A_ssm_k, A_ssm_D, B_x, B_wqkv, B_wo, gate_w):
    def _A_ref(q, k, v, shift_k, ssm_k, ssm_D):
        B, S, D = q.shape
        ks = shift_k.shape[-1]
        k_pad = _pad(k, ((0, 0), (ks - 1, 0), (0, 0)))
        k_shift = torch.zeros_like(k)
        for t in range(ks):
            k_shift = k_shift + k_pad[:, t:t + S, :] * shift_k[:, ks - 1 - t][None, None, :]
        kv = k_shift * v
        L = 2 * S
        kv_pad = _pad(kv, ((0, 0), (0, S), (0, 0)))
        kf_pad = _pad(ssm_k, ((0, 0), (0, S)))
        kv_f = (lambda x, axes=(-2,-1): torch.fft.rfft2(x.float(), dim=axes))(kv_pad[:, None, :, :], axes=(1, 2))
        kf_f = (lambda x, axes=(-2,-1): torch.fft.rfft2(x.float(), dim=axes))(kf_pad[:, None, :], axes=(1, 2))
        kf_f = (lambda x, *d: x.permute(*d))(kf_f, 1, 2, 0)
        y_f = kv_f * kf_f[None, :, :, :]
        y = (lambda x, s, axes=(-2,-1): torch.fft.irfft2(x, s=s, dim=axes).to(torch.bfloat16))(y_f, (1, L), axes=(1, 2))[:, 0, :S, :]
        y = y + kv * ssm_D[None, None, :]
        return q * y

    def _B_ref(x, wqkv, wo):
        B, S, D = x.shape
        H = 32; Dh = D // H
        W, dil = 8, 2
        qkv = (lambda x, *d: x.permute(*d))((x @ wqkv).reshape(B, S, 3, H, Dh), 2, 0, 3, 1, 4)
        q, k, v = qkv[0], qkv[1], qkv[2]
        scale = Dh ** -0.5
        pos = torch.arange(S)
        off = torch.arange(W) * dil
        idx = pos[:, None] - off[None, :]
        mask = idx >= 0
        idx_c = torch.where(mask, idx, 0).reshape(-1)
        kg = k[:, :, idx_c, :].reshape(B, H, S, W, Dh)
        vg = v[:, :, idx_c, :].reshape(B, H, S, W, Dh)
        logits = torch.einsum("bhsd,bhswd->bhsw", q, kg) * scale
        logits = torch.where(mask[None, None, :, :], logits, -1e9)
        attn = _softmax(logits, axis=-1)
        o = torch.einsum("bhsw,bhswd->bhsd", attn, vg)
        return (lambda x, *d: x.permute(*d))(o, 0, 2, 1, 3).reshape(B, S, D) @ wo

    x = A_q
    g = _sigmoid((x * gate_w).sum(-1, keepdims=True))
    a = _A_ref(x, A_k, A_v, A_shift_k, A_ssm_k, A_ssm_D)
    b = _B_ref(x, B_wqkv, B_wo)
    return g * a + (1 - g) * b
```

```python
NAME = "gated_mix__ssm_conv_h3__sliding_local_dilated__prompt"

class Asm:
    def __init__(self):
        self.lines = []
        self._lbl = 0
    def __call__(self, s):
        for l in s.split("\n"):
            self.lines.append("    " + l.strip() if l.strip() and not l.strip().endswith(":") else l.strip())
    def label(self, name):
        self.lines.append(name + ":")
    def newlabel(self, p="L"):
        self._lbl += 1
        return f"{p}_{self._lbl}"
    def text(self):
        return "\n".join(self.lines) + "\n"

def header(launch_lines):
    return "".join(f"; {l}\n" for l in launch_lines) + '.amdgcn_target "amdgcn-amd-amdhsa--gfx950"\n.text\n'

def kernel_begin(name):
    return f".globl {name}\n.p2align 8\n.type {name},@function\n{name}:\n"

def kernel_desc(name, vgpr, sgpr, accum, wgy=False):
    s = f'.section .rodata,"a"\n.p2align 6\n.amdhsa_kernel {name}\n'
    s += f"  .amdhsa_next_free_vgpr {vgpr}\n  .amdhsa_next_free_sgpr {sgpr}\n  .amdhsa_accum_offset {accum}\n"
    s += "  .amdhsa_group_segment_fixed_size 0\n  .amdhsa_kernarg_size 104\n  .amdhsa_user_sgpr_count 2\n"
    s += "  .amdhsa_user_sgpr_kernarg_segment_ptr 1\n  .amdhsa_system_sgpr_workgroup_id_x 1\n"
    if wgy: s += "  .amdhsa_system_sgpr_workgroup_id_y 1\n"
    s += ".end_amdhsa_kernel\n.text\n"
    return s

def srd(a, d, lo, hi, nbytes):
    a(f"s_mov_b32 s{d}, s{lo}")
    a(f"s_and_b32 s{d+1}, s{hi}, 0xffff")
    a(f"s_mov_b32 s{d+2}, {nbytes}")
    a(f"s_mov_b32 s{d+3}, 0x00020000")
```

```python
import re

REG = re.compile(r'\b([vsa])(\d+)\b|\b([vsa])\[(\d+):(\d+)\]|\b(vcc|exec|m0|scc)\b')
TRANS = ("v_exp_f32", "v_log_f32", "v_rcp_f32", "v_rsq_f32", "v_sqrt_f32", "v_sin_f32", "v_cos_f32", "v_rcp_iflag_f32")

def regs_of(op):
    out = set()
    for m in REG.finditer(op):
        if m.group(1): out.add((m.group(1), int(m.group(2))))
        elif m.group(3):
            for i in range(int(m.group(4)), int(m.group(5)) + 1): out.add((m.group(3), i))
        else: out.add((m.group(6), 0))
    return out

def split_ops(s):
    ops, depth, cur = [], 0, ""
    for ch in s:
        if ch == "[": depth += 1
        if ch == "]": depth -= 1
        if ch == "," and depth == 0:
            ops.append(cur.strip()); cur = ""
        else: cur += ch
    if cur.strip(): ops.append(cur.strip())
    return ops

class I:
    def __init__(self, text):
        self.text = text
        t = text.split(";")[0].strip()
        self.label = t[:-1] if t.endswith(":") else None
        self.mn = None; self.r = set(); self.w = set(); self.kind = None
        self.A = self.B = self.C = self.D = set(); self.sdata = set(); self.states = 0; self.target = None
        self.passes = 0; self.lanesel = set()
        if self.label or not t or t.startswith("."): return
        p = t.split(None, 1)
        mn = self.mn = p[0]; rest = p[1] if len(p) > 1 else ""
        ops = split_ops(rest)
        self.states = 1
        R = [regs_of(o) for o in ops]
        allr = set().union(*R) if R else set()
        if mn == "s_nop": self.states = int(ops[0], 0) + 1; self.kind = "nop"; return
        if mn.startswith("s_cbranch") or mn == "s_branch":
            self.kind = "branch"; self.target = ops[0]; return
        if mn.startswith("v_mfma"):
            self.kind = "mfma"; self.D, self.A, self.B, self.C = R[0], R[1], R[2], R[3]
            self.w = R[0]; self.r = R[1] | R[2] | R[3]
            self.passes = 8 if ("32x32" in mn or mn.endswith("x4_f32")) else 4
            return
        if mn.startswith("v_"):
            self.kind = "valu"
            if mn.startswith("v_permlane") and "swap" in mn:
                self.w = R[0] | R[1]; self.r = R[0] | R[1]
            elif mn.startswith(("v_add_co", "v_sub_co", "v_addc_co", "v_subb_co", "v_subrev_co")):
                self.w = R[0] | R[1]; self.r = set().union(*R[2:])
            else:
                self.w = R[0]; self.r = set().union(*R[1:]) if len(R) > 1 else set()
                if mn.startswith(("v_fmac", "v_dot2c", "v_writelane")) or "dst_unused:UNUSED_PRESERVE" in t: self.r |= R[0]
                if mn.startswith("v_cndmask") and len(ops) == 3: self.r.add(("vcc", 0))
            if mn.startswith(("v_readlane", "v_writelane")): self.lanesel = R[2]
            self.dotab = (R[1] | R[2]) if mn.startswith("v_dot2") else set()
            return
        if mn.startswith("ds_"):
            self.kind = "ds"
            if mn.startswith(("ds_read", "ds_bpermute", "ds_permute", "ds_swizzle", "ds_append", "ds_consume")) or "_rtn" in mn:
                self.w = R[0]; self.r = set().union(set(), *R[1:])
            else: self.r = allr
            return
        if mn.startswith(("buffer_", "global_")):
            self.kind = "vmem"
            lds = re.search(r'\blds\b', rest) is not None or "load_lds" in mn
            self.lds = lds
            if "load" in mn and not lds:
                self.w = R[0]; self.r = set().union(*R[1:])
            elif "atomic" in mn and re.search(r'\bsc0\b', rest):
                self.w = R[0]; self.r = allr
            else:
                self.r = allr
                if "store" in mn and ("x3" in mn or "x4" in mn):
                    self.sdata = R[0] if mn.startswith("buffer_") else R[1]
            if lds: self.r = self.r | {("m0", 0)}
            return
        if mn.startswith("s_"):
            self.kind = "salu"
            if mn.startswith(("s_cmp", "s_bitcmp", "s_waitcnt", "s_barrier", "s_sleep", "s_setprio", "s_endpgm", "s_setreg", "s_setvskip")):
                self.r = allr
            else:
                self.w = R[0]; self.r = set().union(*R[1:]) if len(R) > 1 else set()
            return
        raise ValueError("unknown instr " + t)

def isv(s): return {x for x in s if x[0] in "va"}
def iss(s): return {x for x in s if x[0] == "s" or x[0] == "vcc"}

def need(p, c):
    n = 0
    if p.kind == "valu":
        wv = isv(p.w); ws = iss(p.w)
        if c.kind == "mfma" and wv & c.r: n = max(n, 2)
        if c.kind == "valu":
            if wv & c.r:
                if c.mn.startswith("v_permlane") or "dpp" in c.text.split(";")[0]: n = max(n, 2)
                if c.mn.startswith(("v_readlane", "v_readfirstlane")): n = max(n, 1)
                if p.mn.startswith(TRANS) and not c.mn.startswith(TRANS): n = max(n, 1)
                if "sdwa" in p.mn or "op_sel" in p.text: n = max(n, 1)
            if p.mn.startswith("v_dot2") and (wv & (c.r | c.w)) and c.mn != p.mn: n = max(n, 3)
            if p.mn.startswith("v_dot2") and c.mn == p.mn and wv & c.dotab: n = max(n, 3)
            if ws & c.r: n = max(n, 2)
            if ws & c.lanesel: n = max(n, 4)
        if p.mn.startswith("v_dot2") and c.kind in ("mfma", "ds", "vmem") and wv & (c.r | c.w): n = max(n, 3)
        if p.mn.startswith(TRANS) and c.kind in ("ds", "vmem") and wv & c.r: n = max(n, 1)
        if c.kind == "vmem" and ws & c.r: n = max(n, 5)
    if p.kind == "mfma":
        far = {4: 8, 8: 12}[p.passes]
        if c.kind == "mfma":
            if p.D & (c.A | c.B): n = max(n, far)
            if p.D & c.C and not (p.D == c.C and p.passes == c.passes): n = max(n, far - 2)
            if p.D & c.D and not (p.D == c.C): n = max(n, far)
        elif c.kind in ("valu", "ds", "vmem"):
            if p.D & (c.r | c.w): n = max(n, far)
            if c.kind == "valu" and p.C & c.w: n = max(n, {4: 3, 8: 7}[p.passes])
            if c.kind in ("ds", "vmem") and p.C & c.w: n = max(n, {4: 3, 8: 7}[p.passes])
    if p.kind == "salu" and ("m0", 0) in p.w and c.kind == "vmem" and ("m0", 0) in c.r: n = max(n, 1)
    if p.kind == "vmem" and p.sdata and p.sdata & c.w: n = max(n, 2 if c.kind in ("valu", "mfma") else 1)
    return n

WINDOW = 14

def run(lines):
    ins = [I(l) for l in lines]
    total = 0
    def edges():
        labels = {x.label: i for i, x in enumerate(ins) if x.label}
        preds = {}
        for i, x in enumerate(ins):
            if x.kind == "branch" and x.target in labels: preds.setdefault(labels[x.target], []).append(i)
        return preds
    preds = edges()
    ci = 0
    while ci < len(ins):
        c = ins[ci]
        if not c.kind or c.kind in ("nop", "branch"):
            ci += 1; continue
        short = 0
        stack = [(ci - 1, 0, False)]; seen = set()
        while stack:
            j, dist, via_edge = stack.pop()
            while j >= 0 and dist < WINDOW:
                if (j, dist, via_edge) in seen: break
                seen.add((j, dist, via_edge))
                p = ins[j]
                if p.label:
                    for b in preds.get(j, []): stack.append((b, dist, True))
                    j -= 1; via_edge = False; continue
                if p.kind is None: j -= 1; continue
                if p.mn in ("s_branch", "s_endpgm") and not via_edge: break
                via_edge = False
                nd = need(p, c)
                if nd > dist: short = max(short, nd - dist)
                dist += p.states
                j -= 1
        if short:
            ins.insert(ci, I(f"    s_nop {short-1}"))
            total += short; ci += 1
            preds = edges()
        ci += 1
    return [x.text for x in ins], total
```

```python
import sys, math, struct
from asmlib import *
import hazard

STAMPS_ON = "stamps" in sys.argv
OPT = dict(exsplit=1, lastp=0, rp=4096, lowspin=0, hrem=0, tlbat=10, tlb=21, utlb=0, kpoll=3, kgap=3, oloc=0, hmode=0, tsplit=10, tdelay=0, hat=6, tdepth=-1, woreg=0, pA=2, pB=1, la=1, bhold=4, ahold=1, seq3=0, tokat=1, first0=0, hintmax=64, ydrain=0, odrain=0, udrain=0, dchk=0, prioX=3, ygate=10, ohold=0, lsig=4, pipe=0, udirect=0, hfirst=0, udelay=0, es=3, cprio=1, split=1, oldw=0, econs=3, reload=0, orot=0, dry=0, tsleep=4, apoll=0, khprio=0, nb=0, pdelay=0, atom=1, lag=2, wot=1, hearly=1, yfirst=1, rot=0, pf0=0, kvat=4, wodepth=20, spin=0, prioG=2, prioC=1, psleep=4)
for x in sys.argv[1:]:
    if "=" in x:
        k, val = x.split("="); OPT[k] = int(val)
KNAME = NAME + "_kernel"
NW = 12
RP = OPT['rp']
ES = OPT['es']
EPOCH = 0; FSUM = 0x1000; GWS = 0x4000; EO = 0x20000; EU = 0x40000; EY = 0xC00000; FB = 0x10000
UWS = 0x100000; YWS = 0x400000; OWS = 0x700000; STAMPS = 0xA00000; TRACE = 0xB00000; YW2 = 0xD00000; OLOC = 0x900000
SLOT = 49664; WPART = 18432
EX = 133120
EXB = EX + 27 * 512
XQT = 102400; YT = 112640; RED = 133120
AREG = 89600
KT = 0; VT = KT + 21504; US = VT + 20480
HC = AREG; HCH = 8320; HOO = 4160
UL = AREG + 5 * HCH; ULCH = 4608
GW = 154240; FL = GW + 1280; CT = FL + 512; ZR = CT + 3072; GOM = ZR + 2048; HGO = GOM + 512
LDS_BYTES = 163840
assert UL + 5 * ULCH <= GW and US + 20480 <= GW and HGO + 128 <= LDS_BYTES and EXB + 4096 <= GW
F_LAND = 0; F_CONS = 40; F_TOK = 80; F_KVT = 84; F_USC = 88; F_UST = 92; F_UGO = 96; F_CRDY = 100
F_EXW = 104; F_EXR = 108; F_OST = 112; F_WOL = 120; F_YST = 124; F_YLD = 128; F_TAG = 132
F_RED = 136; F_TGO = 152; F_CT = 156; F_ZERO = 160; F_OLD = 168; F_CVD = 172; F_A0D = 176; F_DRY = 192; F_OGO = 180; F_ARD = 196; F_QRD = 212; F_GRD = 188; F_YGO = 116; F_HRD = 20; F_HGO = 228; F_LANB = 256; F_CONA = 304; F_PRD = 352
NVGPR = 168
SPIN_MAX = 1 << 20

a = Asm()
sX, sK, sV, sSH, sSSM, sDD, sWQ, sWO, sGW, sOUT, sWS = 4, 6, 8, 10, 12, 14, 18, 20, 22, 24, 28
sRB, sCG, sWV, sTAG, sSTART, sXM, sJJ, sROLE, sXCD = 30, 31, 32, 33, 34, 35, 36, 37, 38
sT0, sT1, sT2, sT3, sSPIN = 96, 97, 98, 99, 100
vLANE, vN, vG, vFL, vT0, vT1, vT2, vT3 = 0, 1, 2, 3, 4, 5, 6, 7
vTR = 167

def v(i, n=1): return f"v{i}" if n == 1 else f"v[{i}:{i+n-1}]"
def s(i, n=1): return f"s{i}" if n == 1 else f"s[{i}:{i+n-1}]"
def f2u(x): return struct.unpack("<I", struct.pack("<f", x))[0]
MF = "v_mfma_f32_16x16x32_bf16"

def trace():
    if not STAMPS_ON: return
    a("s_mov_b32 m0, s95")
    a(f"v_writelane_b32 v{vTR}, s70, m0")
    a("s_mov_b32 s95, s94")
    a("s_add_u32 s94, s94, 1")
    a("s_memrealtime s[70:71]" if OPT.get("rt") else "s_memtime s[70:71]")
def trace_at(i):
    if not STAMPS_ON: return
    a(f"s_mov_b32 s94, {i}")
    trace()
def finish():
    if STAMPS_ON:
        a("s_mov_b64 exec, -1")
        a("s_waitcnt lgkmcnt(0)")
        a("s_mov_b32 m0, s95")
        a(f"v_writelane_b32 v{vTR}, s70, m0")
        a("s_memtime s[76:77]")
        a("s_memrealtime s[78:79]")
        a(f"s_mul_i32 s{sT0}, s2, {NW}")
        a(f"s_add_u32 s{sT0}, s{sT0}, s{sWV}")
        a(f"s_lshl_b32 s{sT1}, s{sT0}, 8")
        a(f"s_add_u32 s{sT1}, s{sT1}, {TRACE}")
        a(f"v_lshl_add_u32 v{vT0}, v{vLANE}, 2, s{sT1}")
        a(f"global_store_dword v{vT0}, v{vTR}, s[{sWS}:{sWS+1}]")
        a(f"s_lshl_b32 s{sT1}, s{sT0}, 7")
        a(f"s_add_u32 s{sT1}, s{sT1}, {STAMPS}")
        a("s_mov_b64 exec, 1")
        a(f"v_mov_b32 v{vT0}, s{sT1}")
        a("s_waitcnt lgkmcnt(0)")
        for j in range(8): a(f"v_mov_b32 v{8+j}, s{72+j}")
        a(f"global_store_dwordx4 v{vT0}, v[8:11], s[{sWS}:{sWS+1}]")
        a(f"global_store_dwordx4 v{vT0}, v[12:15], s[{sWS}:{sWS+1}] offset:16")
    a("s_endpgm")

def lds_wait(off, val, vaddr=vFL, vt=vT0, sleep=1):
    l = a.newlabel("Lw"); d = a.newlabel("Lwd")
    a(f"s_mov_b32 s{sSPIN}, 0")
    a.label(l)
    a(f"ds_read_b32 v{vt}, v{vaddr} offset:{off}")
    a("s_waitcnt lgkmcnt(0)")
    a(f"v_readfirstlane_b32 s{sT3}, v{vt}")
    a(f"s_cmp_ge_u32 s{sT3}, {val}")
    a(f"s_cbranch_scc1 {d}")
    sleep = max(sleep, OPT["spin"])
    if sleep: a(f"s_sleep {sleep}")
    a(f"s_add_u32 s{sSPIN}, s{sSPIN}, 1")
    a(f"s_cmp_lt_u32 s{sSPIN}, {SPIN_MAX}")
    a(f"s_cbranch_scc1 {l}")
    a.label(d)
def lds_add_txt(off, vaddr=vFL, vt=vT0):
    return f"v_mov_b32 v{vt}, 1\ns_mov_b64 exec, 1\nds_add_u32 v{vaddr}, v{vt} offset:{off}\ns_mov_b64 exec, -1"
def lds_add(off, vaddr=vFL, vt=vT0): a(lds_add_txt(off, vaddr, vt))
def lds_set(off, val, vaddr=vFL, vt=vT0):
    a(f"v_mov_b32 v{vt}, {val}")
    a(f"ds_write_b32 v{vaddr}, v{vt} offset:{off}")
def lds_add_rtn(off, sdst, vt=vT0):
    a(f"v_mov_b32 v{vt}, 1")
    a("s_mov_b64 exec, 1")
    a(f"ds_add_rtn_u32 v{vt}, v{vFL}, v{vt} offset:{off}")
    a("s_waitcnt lgkmcnt(0)")
    a(f"v_readfirstlane_b32 s{sdst}, v{vt}")
    a("s_mov_b64 exec, -1")
def flag_store(soff):
    a(f"v_mov_b32 v{vT0}, s{soff}")
    a(f"v_mov_b32 v{vT1}, s{sTAG}")
    a("s_mov_b64 exec, 1")
    a(f"global_store_dword v{vT0}, v{vT1}, s[{sWS}:{sWS+1}] sc1")
    a("s_mov_b64 exec, -1")
def flag_poll(soff, nflags, sl=1):
    l = a.newlabel("Lp"); d = a.newlabel("Lpd")
    a(f"v_lshl_add_u32 v{vT0}, v{vLANE}, 2, s{soff}")
    a(f"s_mov_b64 exec, {hex((1 << nflags) - 1)}")
    a(f"s_mov_b32 s{sSPIN}, 0")
    a.label(l)
    if OPT["atom"]:
        a(f"v_mov_b32 v16, 0")
        a(f"global_atomic_or v{vT1}, v{vT0}, v16, s[{sWS}:{sWS+1}] sc0 sc1")
    else:
        a(f"global_load_dword v{vT1}, v{vT0}, s[{sWS}:{sWS+1}] sc1")
    a("s_waitcnt vmcnt(0)")
    a(f"v_cmp_ne_u32 vcc, s{sTAG}, v{vT1}")
    a(f"s_cbranch_vccz {d}")
    a(f"s_sleep {sl}")
    a(f"s_add_u32 s{sSPIN}, s{sSPIN}, 1")
    a(f"s_cmp_lt_u32 s{sSPIN}, {SPIN_MAX}")
    a(f"s_cbranch_scc1 {l}")
    a.label(d)
    a("s_mov_b64 exec, -1")
def t10(vd, qbase, sadd, vt):
    a(f"v_add_u32 v{vt}, {qbase}, v{vLANE}")
    a(f"v_mul_u32_u24 v{vd}, 6554, v{vt}")
    a(f"v_lshrrev_b32 v{vd}, 16, v{vd}")
    a(f"v_mul_u32_u24 v{vd}, 1120, v{vd}")
    a(f"v_lshl_add_u32 v{vt}, v{vt}, 4, {sadd}")
    a(f"v_add_u32 v{vd}, v{vd}, v{vt}")
def pack(dst, src):
    a(f"v_cvt_pk_bf16_f32 v{dst}, v{src}, v{src+1}")
    a(f"v_cvt_pk_bf16_f32 v{dst+1}, v{src+2}, v{src+3}")
def lds_pipe(reads, work, gate, maxfly=14, pre=0, eager=False):
    ri = pre; done = pre - 1
    for j, (needed, text) in enumerate(work):
        if eager and ri < len(reads) and gate[ri] < j and (ri - 1 - done) >= maxfly:
            a(f"s_waitcnt lgkmcnt({maxfly - 2})"); done = ri - 1 - (maxfly - 2)
        while ri < len(reads) and gate[ri] < j and (ri - 1 - done) < maxfly:
            a(reads[ri]); ri += 1
        assert ri > needed, (ri, needed, j)
        if needed > done:
            a(f"s_waitcnt lgkmcnt({ri - 1 - needed})")
            done = needed
        a(text)
    assert ri == len(reads)

def flag_bcast(kind):
    if kind == "O":
        n = 16
        a(f"v_lshrrev_b32 v{vT0}, 3, v{vLANE}")
        a(f"v_and_b32 v{vT1}, 7, v{vLANE}")
        a(f"v_lshlrev_b32 v{vT0}, 15, v{vT0}")
        a(f"v_lshl_add_u32 v{vT0}, v{vT1}, 8, v{vT0}")
        a(f"s_lshl_b32 s{sT0}, s{sRB}, 11")
        a(f"s_lshl_b32 s{sT1}, s{sCG}, 2")
        a(f"s_add_u32 s{sT0}, s{sT0}, s{sT1}")
        a(f"s_add_u32 s{sT0}, s{sT0}, {FB + 64}")
    else:
        n = 16 if kind == "U" else 32
        a(f"v_lshlrev_b32 v{vT0}, 11, v{vLANE}")
        a(f"s_lshl_b32 s{sT0}, s{sCG}, 8")
        a(f"s_lshl_b32 s{sT1}, s{sRB}, 2")
        a(f"s_add_u32 s{sT0}, s{sT0}, s{sT1}")
        a(f"s_add_u32 s{sT0}, s{sT0}, {FB + (128*256 + 128 if kind == 'U' else 0)}")
    a(f"v_add_u32 v{vT0}, s{sT0}, v{vT0}")
    a(f"v_mov_b32 v{vT1}, s{sTAG}")
    a(f"s_mov_b64 exec, {hex((1 << n) - 1)}")
    a(f"global_store_dword v{vT0}, v{vT1}, s[{sWS}:{sWS+1}] sc1")
    a("s_mov_b64 exec, -1")
def my_block(sd):
    a(f"s_lshl_b32 s{sd}, s{sROLE}, 4")
    a(f"s_add_u32 s{sd}, s{sd}, s{sRB}")
    a(f"s_lshl_b32 s{sd}, s{sd}, 3")
    a(f"s_add_u32 s{sd}, s{sd}, s{sCG}")
    a(f"s_lshl_b32 s{sd}, s{sd}, 8")
    a(f"s_add_u32 s{sd}, s{sd}, {FB}")
def row_allreduce(r):
    for k in (8, 4, 2, 1): a(f"v_add_u32_dpp v{r}, v{r}, v{r} row_ror:{k} row_mask:0xf bank_mask:0xf")
def wave_sum_zero(r, ref=0):
    row_allreduce(r)
    for k in range(4): a(f"v_readlane_b32 s{sT0+k}, v{r}, {16*k}")
    a(f"s_add_u32 s{sT0}, s{sT0}, s{sT1}")
    a(f"s_add_u32 s{sT2}, s{sT2}, s{sT3}")
    a(f"s_add_u32 s{sT0}, s{sT0}, s{sT2}")
    a(f"s_cmp_eq_u32 s{sT0}, {ref}")
def entry_poll(vaddr, vd, mask, vz, sl=0):
    l = a.newlabel("Le"); d = a.newlabel("Led")
    a(f"s_mov_b64 exec, {mask}")
    a(f"s_mov_b32 s{sSPIN}, 0")
    a.label(l)
    if OPT.get("eload"): a(f"global_load_dwordx2 {v(vd,2)}, v{vaddr}, s[{sWS}:{sWS+1}] sc1")
    else: a(f"global_atomic_or_x2 {v(vd,2)}, v{vaddr}, {v(vz,2)}, s[{sWS}:{sWS+1}] sc0 sc1")
    a("s_waitcnt vmcnt(0)")
    a(f"v_cmp_ne_u32 vcc, s{sTAG}, v{vd}")
    a(f"s_cbranch_vccz {d}")
    a("s_mov_b64 exec, vcc")
    sl = max(sl, OPT.get("esleep", 0))
    if sl: a(f"s_sleep {sl}")
    a(f"s_add_u32 s{sSPIN}, s{sSPIN}, 1")
    a(f"s_cmp_lt_u32 s{sSPIN}, {SPIN_MAX}")
    a(f"s_cbranch_scc1 {l}")
    a.label(d)
    a("s_mov_b64 exec, -1")
def entry_poll2(vaddr, vd, vd2, mask, vz):
    l = a.newlabel("Le"); d = a.newlabel("Led"); d2 = a.newlabel("Lee")
    at = lambda r: a(f"global_atomic_or_x2 {v(r,2)}, v{vaddr}, {v(vz,2)}, s[{sWS}:{sWS+1}] sc0 sc1")
    a(f"s_mov_b64 exec, {mask}")
    a(f"s_mov_b32 s{sSPIN}, 0")
    at(vd2)
    a.label(l)
    a(f"s_sleep {OPT['pipe']}")
    at(vd2 + 2)
    a("s_waitcnt vmcnt(1)")
    a(f"v_cmp_ne_u32 vcc, s{sTAG}, v{vd2}")
    a(f"v_mov_b32 v{vd+1}, v{vd2+1}")
    a(f"s_cbranch_vccz {d}")
    a(f"s_sleep {OPT['pipe']}")
    at(vd2)
    a("s_waitcnt vmcnt(1)")
    a(f"v_cmp_ne_u32 vcc, s{sTAG}, v{vd2+2}")
    a(f"v_mov_b32 v{vd+1}, v{vd2+3}")
    a(f"s_cbranch_vccz {d}")
    a(f"s_add_u32 s{sSPIN}, s{sSPIN}, 1")
    a(f"s_cmp_lt_u32 s{sSPIN}, {SPIN_MAX}")
    a(f"s_cbranch_scc1 {l}")
    a.label(d)
    a("s_mov_b64 exec, -1")
cRET, cVAL, cADR = 28, 30, 32
sCM, sTB = 46, 39
def cell_add():
    a(f"v_mov_b32 v{cVAL+1}, 0x100")
    a(f"s_mov_b64 exec, s[{sCM}:{sCM+1}]")
    a(f"global_atomic_add_x2 {v(cRET,2)}, v{cADR}, {v(cVAL,2)}, s[{sWS}:{sWS+1}] sc0 sc1")
    a("s_mov_b64 exec, -1")
def cell_verify():
    l = a.newlabel("Lcv"); d = a.newlabel("Lcd")
    a(f"s_mov_b32 s{sSPIN}, 0")
    a(f"s_and_b32 s{sTB}, s{sTAG}, 0xffffff00")
    a.label(l)
    a("s_waitcnt vmcnt(0)")
    a(f"v_subrev_u32 v{cRET}, s{sTB}, v{cRET+1}")
    a(f"v_cmp_le_u32 vcc, 0x1000, v{cRET}")
    a(f"s_and_b64 s[{sCM}:{sCM+1}], s[{sCM}:{sCM+1}], vcc")
    a(f"s_cbranch_scc0 {d}")
    a("s_sleep 8")
    cell_add()
    a(f"s_add_u32 s{sSPIN}, s{sSPIN}, 1")
    a(f"s_cmp_lt_u32 s{sSPIN}, {SPIN_MAX}")
    a(f"s_cbranch_scc1 {l}")
    a.label(d)
def pp(idn, wave, sval=None):
    if OPT.get("pp") != idn: return
    lb = a.newlabel("Lpp")
    a(f"s_cmp_lg_u32 s{sWV}, {wave}")
    a(f"s_cbranch_scc1 {lb}")
    a("s_memrealtime s[76:77]")
    a("s_lshl_b32 s78, s2, 2")
    a(f"s_add_u32 s78, s78, {FSUM + 2048}")
    a(f"v_mov_b32 v{vT0}, s78")
    a("s_waitcnt lgkmcnt(0)")
    if sval is not None:
        a(f"s_mul_i32 s76, s{sval}, 1000")
        a("s_add_u32 s76, s76, s72")
    a(f"v_mov_b32 v{vT1}, s76")
    a("s_mov_b64 s[80-2:80-1], exec".replace("80-2", "76").replace("80-1", "77"))
    a("s_mov_b64 exec, 1")
    a(f"global_store_dword v{vT0}, v{vT1}, s[{sWS}:{sWS+1}] sc1")
    a("s_mov_b64 exec, s[76:77]")
    a.label(lb)
def get_tag(hold=None):
    a(f"s_load_dword s{sTAG}, s[{sWS}:{sWS+1}], {EPOCH}")
    a(f"v_mov_b32 v{vT0}, 0")
    a(f"v_and_b32 v{vT2}, 31, v{vLANE}")
    a(f"v_lshlrev_b32 v{vT2}, 2, v{vT2}")
    a(f"v_add_u32 v{vT2}, {HGO}, v{vT2}")
    a(f"ds_write_b32 v{vT2}, v{vT0}")
    a("s_waitcnt lgkmcnt(0)")
    a(f"s_mul_i32 s{sTAG}, s{sTAG}, 1664525")
    a(f"s_add_u32 s{sTAG}, s{sTAG}, 1013904223")
    lds_set(F_TAG, f"s{sTAG}", vt=vT1)
    a("s_waitcnt lgkmcnt(0)")
    lds_set(F_TGO, 1, vt=vT1)
    if hold: hold()
    a(f"s_lshl_b32 s{sT0}, s2, 2")
    a(f"s_add_u32 s{sT0}, s{sT0}, {FSUM}")
    if OPT.get("probe"):
        a(f"v_mov_b32 v{vT0}, s{sT0}"); a(f"v_mov_b32 v{vT1}, s72")
        a(f"global_store_dword v{vT0}, v{vT1}, s[{sWS}:{sWS+1}] offset:1024 sc1")
        a("s_waitcnt vmcnt(0)")
    my_block(sT0)
    a(f"v_lshl_add_u32 v{vT0}, v{vLANE}, 3, s{sT0}")
    a(f"v_mov_b32 v{vT2}, 0")
    a(f"v_writelane_b32 v{vT2}, s{sTAG}, 15")
    a(f"s_and_b32 s{sT1}, s{sTAG}, 0xffffff00")
    a(f"v_mov_b32 v{vT3}, s{sT1}")
    a("s_mov_b64 exec, 0xffff")
    a(f"global_store_dwordx2 v{vT0}, {v(vT2,2)}, s[{sWS}:{sWS+1}] sc1")
    a("s_mov_b64 exec, -1")
def tlb_touch():
    if OPT.get("tlb"):
        sh = OPT["tlb"]
        a(f"s_lshl_b32 s{sT0}, s2, 7")
        a(f"s_add_u32 s{sT0}, s{sT0}, 0x400000")
        a(f"v_lshl_add_u32 v{vT0}, v{vLANE}, {sh}, s{sT0}")
        a(f"v_mov_b32 v{vT1}, 0")
        n = (0xC00000 >> sh)
        a(f"s_mov_b64 exec, {hex((1 << min(n, 32)) - 1)}")
        if n > 32: a(f"s_mov_b32 exec_hi, {hex((1 << (n - 32)) - 1)}")
        a(f"global_atomic_or v{vT0}, v{vT1}, s[{sWS}:{sWS+1}] sc1")
        a("s_mov_b64 exec, 1")
        a(f"v_mov_b32 v{vT0}, s{sXM}")
        a(f"global_load_dword v60, v{vT0}, s[{sOUT}:{sOUT+1}]")
        a("s_mov_b64 exec, -1")
def cell_wait(vaddr, sdst, sl=0):
    l = a.newlabel("Lw"); d = a.newlabel("Lwd")
    a(f"s_mov_b32 s{sSPIN}, 0")
    a.label(l)
    a(f"ds_read_b64 {v(vT0,2)}, v{vaddr}")
    a("s_waitcnt lgkmcnt(0)")
    a(f"v_readfirstlane_b32 s{sT3}, v{vT1}")
    a(f"v_readfirstlane_b32 s{sdst}, v{vT0}")
    a(f"s_cmp_ge_u32 s{sT3}, 1")
    a(f"s_cbranch_scc1 {d}")
    if max(sl, OPT["spin"]): a(f"s_sleep {max(sl, OPT['spin'])}")
    a(f"s_add_u32 s{sSPIN}, s{sSPIN}, 1")
    a(f"s_cmp_lt_u32 s{sSPIN}, {SPIN_MAX * 8}")
    a(f"s_cbranch_scc1 {l}")
    a.label(d)
def read_tag():
    lds_wait(F_TGO, 1, sleep=0)
    a(f"ds_read_b32 v{vT1}, v{vFL} offset:{F_TAG}")
    a("s_waitcnt lgkmcnt(0)")
    a(f"v_readfirstlane_b32 s{sTAG}, v{vT1}")
    if OPT["dchk"]:
        a(f"s_or_b32 s101, s{sTAG}, 0x10001")
        a("s_andn2_b32 s101, s101, 0x20002")
def cs2(dst, r0, r1, acc=True):
    if OPT["dchk"]:
        return f"v_dot2_u32_u16 v{dst}, v{r0}, s101, {'v%d' % dst if acc else 0}\nv_dot2_u32_u16 v{dst}, v{r1}, s101, v{dst}"
    return f"v_add3_u32 v{dst}, v{dst}, v{r0}, v{r1}" if acc else f"v_add_u32 v{dst}, v{r0}, v{r1}"
TT = 8
SRD_X, SRD_W, SRD_O, SRD_G = 40, 44, 48, 52
sSO, sCNT = 59, 63
def dma_rows(srd_, n32, depth):
    l = a.newlabel("Ldr")
    a(f"s_mov_b32 s{sCNT}, {n32}")
    a.label(l)
    for i in range(5):
        a(f"buffer_load_dwordx4 v{TT + i}, s[{srd_}:{srd_+3}], s{sSO} offen lds")
        a("s_add_u32 m0, m0, 1024")
    if depth is not None: a(f"s_waitcnt vmcnt({depth})")
    a(f"s_add_u32 s{sSO}, s{sSO}, 40960")
    a(f"s_sub_u32 s{sCNT}, s{sCNT}, 1")
    a(f"s_cmp_lg_u32 s{sCNT}, 0")
    a(f"s_cbranch_scc1 {l}")
def wo_load(row0, n32, depth):
    a(f"s_mov_b32 m0, {160*row0}")
    a(f"s_mov_b32 s{sSO}, {1280*row0}")
    dma_rows(SRD_O, n32, depth)
def xq_load():
    a(f"s_mov_b32 m0, {XQT}")
    a(f"s_mul_i32 s{sSO}, s{sROLE}, {64*1280}")
    a(f"s_add_u32 s{sSO}, s{sSO}, s{sXM}")
    dma_rows(SRD_X, 2, None)

a.label("L_entry")
if STAMPS_ON:
    a("s_memrealtime s[72:73]"); a("s_memtime s[74:75]")
elif OPT.get("probe"): a("s_memrealtime s[72:73]")
a("s_load_dwordx16 s[4:19], s[0:1], 0")
a("s_load_dwordx8 s[20:27], s[0:1], 64")
a("s_load_dwordx2 s[28:29], s[0:1], 96")
a("s_cmp_ge_u32 s2, 256")
a("s_cbranch_scc1 L_end")
a(f"v_lshrrev_b32 v{vT0}, 6, v0")
a(f"v_and_b32 v{vLANE}, 63, v0")
a(f"v_readfirstlane_b32 s{sWV}, v{vT0}")
a("s_getpc_b64 s[46:47]")
a.label("L_pc")
a(f"s_lshr_b32 s{sT0}, s2, 3")
a(f"s_mul_i32 s{sT0}, s{sT0}, {7*128}")
a(f"s_cmp_lg_u32 s{sWV}, 1")
a("s_cbranch_scc1 L_nopf")
a(f"v_lshl_add_u32 v{vT0}, v{vLANE}, 7, s{sT0}")
a(f"v_min_u32 v{vT0}, L_codeend-L_pc-4, v{vT0}")
a("s_mov_b64 exec, 0x7f")
a(f"global_load_dword v20, v{vT0}, s[46:47]")
a("s_mov_b64 exec, -1")
a.label("L_nopf")
a(f"v_mov_b32 v{vFL}, {FL}")
a(f"v_lshl_add_u32 v{vT1}, v{vLANE}, 3, v{vFL}")
a(f"v_mov_b32 v{vT2}, 0"); a(f"v_mov_b32 v{vT3}, 0")
a(f"ds_write_b64 v{vT1}, {v(vT2,2)}")
a(f"v_lshrrev_b32 v{vG}, 4, v{vLANE}")
a(f"v_and_b32 v{vN}, 15, v{vLANE}")
if STAMPS_ON:
    a(f"v_mov_b32 v{vTR}, 0"); a("s_mov_b32 s95, 63"); a("s_mov_b32 s94, 0"); a("s_mov_b32 s70, 0")
if OPT.get("scramble"):
    a(f"s_bfe_u32 s{sXCD}, s2, {4 | (3 << 16)}")
    a(f"s_and_b32 s{sJJ}, s2, 15")
else:
    a(f"s_and_b32 s{sXCD}, s2, 7")
    a(f"s_bfe_u32 s{sJJ}, s2, {3 | (4 << 16)}")
rb_ = OPT.get("rolebit", 4)
if rb_ == 4: a(f"s_lshr_b32 s{sROLE}, s2, 7")
else:
    a(f"s_bfe_u32 s{sROLE}, s2, {(3 + rb_) | (1 << 16)}")
    a(f"s_lshr_b32 s{sT0}, s2, {4 + rb_}")
    a(f"s_lshl_b32 s{sT0}, s{sT0}, {rb_}")
    a(f"s_bfe_u32 s{sJJ}, s2, {3 | (rb_ << 16)}")
    a(f"s_or_b32 s{sJJ}, s{sJJ}, s{sT0}")
a(f"s_and_b32 s{sT2}, s{sXCD}, 1")
a(f"s_lshl_b32 s{sT2}, s{sT2}, 2")
a(f"s_and_b32 s{sT3}, s{sJJ}, 3")
a(f"s_or_b32 s{sCG}, s{sT2}, s{sT3}")
a(f"s_lshr_b32 s{sT0}, s{sXCD}, 1")
a(f"s_lshl_b32 s{sT0}, s{sT0}, 2")
a(f"s_lshr_b32 s{sT1}, s{sJJ}, 2")
a(f"s_or_b32 s{sRB}, s{sT0}, s{sT1}")
a(f"s_mul_i32 s{sXM}, s{sRB}, {128*1280}")
if OPT["rot"] == 1:
    a(f"s_add_u32 s{sT3}, s{sT3}, s{sT1}")
    a(f"s_and_b32 s{sT3}, s{sT3}, 3")
    a(f"s_mul_i32 s{sT3}, s{sT3}, 5")
    a(f"s_add_u32 s{sT3}, s{sT3}, 1")
    a(f"s_lshr_b32 s{sSTART}, s{sT3}, 1")
else:
    a(f"s_mov_b32 s{sSTART}, 0")
a(f"s_sub_u32 s{sT0}, 3, s{sROLE}")
a(f"s_cmp_lt_u32 s{sWV}, s{sT0}")
a("s_cbranch_scc1 L_w0")
a("s_waitcnt lgkmcnt(0)")
a("s_barrier")
a("s_branch L_notloader")
a.label("L_w0")
a("s_setprio 3")
vTW, vTX = 15, 16
sTS = 66
def touch_pairs(send, depth=None):
    l = a.newlabel("Lt")
    a.label(l)
    a(f"s_mul_i32 s{sT0}, s{sTS}, {64*3840}")
    a(f"s_lshl_b32 s{sT1}, s{sTS}, 7")
    a("s_mov_b32 exec_hi, 0xfffffff")
    a(f"buffer_load_dword v17, v{vTW}, s[{SRD_W}:{SRD_W+3}], s{sT0} offen")
    a("s_mov_b64 exec, -1")
    a(f"buffer_load_dword v18, v{vTX}, s[{SRD_X}:{SRD_X+3}], s{sT1} offen")
    a(f"s_add_u32 s{sT0}, s{sT0}, {64*3840}")
    a("s_mov_b32 exec_hi, 0xfffffff")
    a(f"buffer_load_dword v19, v{vTW}, s[{SRD_W}:{SRD_W+3}], s{sT0} offen")
    a("s_mov_b64 exec, -1")
    if depth is not None: a(f"s_waitcnt vmcnt({depth})")
    a(f"s_add_u32 s{sTS}, s{sTS}, 2")
    a(f"s_cmp_lt_u32 s{sTS}, {send}")
    a(f"s_cbranch_scc1 {l}")
a(f"s_cmp_eq_u32 s{sROLE}, 0")
a("s_cbranch_scc1 L_bload")
a(f"s_mul_i32 s{sT0}, s{sJJ}, 60")
a(f"v_add_u32 v{vT0}, s{sT0}, v{vLANE}")
a(f"v_mul_u32_u24 v{vT1}, 13108, v{vT0}")
a(f"v_lshrrev_b32 v{vT1}, 16, v{vT1}")
a(f"v_mul_u32_u24 v{vT1}, 640, v{vT1}")
a(f"v_lshl_add_u32 v{vT1}, v{vT0}, 7, v{vT1}")
a(f"s_and_b32 s{sT0}, s{sXCD}, 1")
a(f"s_mul_i32 s{sT0}, s{sT0}, 640")
a(f"v_add_u32 v{vTW}, s{sT0}, v{vT1}")
a(f"s_lshr_b32 s{sT0}, s{sXCD}, 1")
a(f"s_lshl_b32 s{sT0}, s{sT0}, 9")
a(f"s_lshl_b32 s{sT1}, s{sJJ}, 5")
a(f"s_add_u32 s{sT0}, s{sT0}, s{sT1}")
a(f"v_and_b32 v{vTX}, 31, v{vLANE}")
a(f"v_add_u32 v{vTX}, s{sT0}, v{vTX}")
a(f"v_mul_u32_u24 v{vTX}, 1280, v{vTX}")
a(f"v_lshrrev_b32 v{vT0}, 5, v{vLANE}")
a(f"v_lshl_add_u32 v{vTX}, v{vT0}, 7, v{vTX}")
a(f"s_mov_b32 s{sTS}, 0")
a("s_waitcnt lgkmcnt(0)")
srd(a, SRD_X, sX, sX + 1, 2048 * 1280)
srd(a, SRD_W, sWQ, sWQ + 1, 640 * 3840)
a(f"s_cmp_lg_u32 s{sWV}, 0")
a("s_cbranch_scc1 L_w0bar")
touch_pairs(2)
a.label("L_w0bar")
a("s_barrier")
a("s_branch L_aload")
a.label("L_bload")

sXH, sLIT, sLST, sLSL = 57, 60, 61, 62
XE, XO = 13, 14
a(f"v_lshrrev_b32 v{vT0}, 3, v{vLANE}")
a(f"v_mul_u32_u24 v{vT0}, 1280, v{vT0}")
a(f"v_and_b32 v{vT1}, 7, v{vLANE}")
a(f"v_xor_b32 v{vT1}, v{vT1}, v{vG}")
a(f"v_lshl_add_u32 v{XE}, v{vT1}, 4, v{vT0}")
a(f"v_xor_b32 v{XO}, 64, v{XE}")
a(f"s_sub_u32 s{sXH}, s{sXM}, {16*1280}")
a(f"s_cmp_eq_u32 s{sRB}, 0")
a(f"s_cselect_b32 s{sXH}, 0, s{sXH}")
a(f"s_mul_i32 s{sT0}, s{sCG}, 160")
t10(TT, 0, f"s{sT0}", vT0)
sPEND = 58
vLS = 17
a(f"s_mov_b32 s{sLIT}, 0")
a(f"s_mov_b32 s{sLSL}, 0")
a(f"s_mov_b32 s{sLST}, s{sSTART}")
a(f"s_mov_b32 s{sPEND}, 0")
vLC = 18
a(f"s_cmp_eq_u32 s{sWV}, 2")
a(f"s_cselect_b32 s{sT0}, {F_LANB - 4}, -4")
a(f"v_add_u32 v{vLS}, s{sT0}, v{vFL}")
a(f"s_cmp_eq_u32 s{sWV}, 1")
a(f"s_cselect_b32 s{sT0}, {F_CONA - 12}, {F_CONS - 12}")
a(f"s_cselect_b32 s67, {9 if OPT['hrem'] else 8}, 9")
a(f"v_add_u32 v{vLC}, s{sT0}, v{vFL}")
def loader_loop(tag, n, issue):
    L = f"L_ld_{tag}"
    a.label(L)
    if OPT["first0"]:
        a(f"s_cmp_lg_u32 s{sLIT}, 1")
        a(f"s_cbranch_scc1 {L}_n1")
        a("s_waitcnt vmcnt(0)")
        lds_add(F_LAND, vaddr=vLS)
        trace()
        a(f"s_mov_b32 s{sPEND}, 0")
        a.label(f"{L}_n1")
    a(f"s_cmp_lt_u32 s{sLIT}, 3")
    a(f"s_cbranch_scc1 {L}_go")
    a(f"ds_read_b32 v{vT0}, v{vLC}")
    a("s_waitcnt lgkmcnt(0)")
    a(f"v_readfirstlane_b32 s{sT3}, v{vT0}")
    a(f"s_cmp_ge_u32 s{sT3}, s67")
    a(f"s_cbranch_scc1 {L}_go")
    a(f"s_cmp_eq_u32 s{sPEND}, 0")
    a(f"s_cbranch_scc1 {L}_sp")
    a("s_waitcnt vmcnt(0)")
    lds_add(F_LAND, vaddr=vLS)
    trace()
    a(f"s_mov_b32 s{sPEND}, 0")
    a.label(f"{L}_sp")
    if OPT["lowspin"] & 2: a("s_setprio 0")
    lds_wait(0, "s67", vaddr=vLC, sleep=1 if OPT["lowspin"] & 16 else 0)
    if OPT["lowspin"] & 2: a("s_setprio 3")
    a.label(f"{L}_go")
    def mid():
        a(f"s_cmp_eq_u32 s{sPEND}, 0")
        a(f"s_cbranch_scc1 {L}_np")
        a(f"s_waitcnt vmcnt({OPT['lsig']})")
        a("s_mov_b64 s[68:69], exec")
        lds_add(F_LAND, vaddr=vLS)
        a("s_mov_b64 exec, s[68:69]")
        if STAMPS_ON:
            a("s_mov_b32 s66, m0"); trace(); a("s_mov_b32 m0, s66")
        a.label(f"{L}_np")
    issue(mid)
    a(f"s_mov_b32 s{sPEND}, 1")
    a(f"v_add_u32 v{vLS}, 4, v{vLS}")
    a(f"v_add_u32 v{vLC}, 4, v{vLC}")
    a(f"s_add_u32 s{sLST}, s{sLST}, 1")
    a(f"s_cmp_eq_u32 s{sLST}, 10")
    a(f"s_cselect_b32 s{sLST}, 0, s{sLST}")
    a(f"s_add_u32 s{sLSL}, s{sLSL}, {SLOT}")
    a(f"s_cmp_eq_u32 s{sLSL}, {3*SLOT}")
    a(f"s_cselect_b32 s{sLSL}, 0, s{sLSL}")
    a(f"s_add_u32 s{sLIT}, s{sLIT}, 1")
    a(f"s_cmp_lt_u32 s{sLIT}, 10")
    a(f"s_cbranch_scc1 {L}")
def issue_x(mid):
    a(f"s_mov_b32 m0, s{sLSL}")
    a(f"s_lshl_b32 s{sT0}, s{sLST}, 7")
    a(f"s_add_u32 s{sSO}, s{sXH}, s{sT0}")
    for i in range(18):
        if i == OPT["lsig"]: mid()
        if i == 2: a(f"s_add_u32 s{sSO}, s{sXM}, s{sT0}")
        a(f"buffer_load_dwordx4 v{XE if i % 2 == 0 else XO}, s[{SRD_X}:{SRD_X+3}], s{sSO} offen lds")
        a("s_add_u32 m0, m0, 1024")
        if i != 1: a(f"s_add_u32 s{sSO}, s{sSO}, 10240")
def issue_w(mid):
    a(f"s_add_u32 m0, s{sLSL}, s64")
    a(f"s_mul_i32 s{sSO}, s{sLST}, {64*3840}")
    a(f"s_add_u32 s{sSO}, s{sSO}, s65")
    a("s_mov_b32 exec_hi, 0xfffffff")
    for i in range(16):
        if i == OPT["lsig"]: mid()
        a(f"buffer_load_dwordx4 v{TT}, s[{SRD_W}:{SRD_W+3}], s{sSO} offen lds")
        a(f"s_add_u32 m0, m0, {960 + (128 if i % 8 == 3 else 0)}")
        a(f"s_add_u32 s{sSO}, s{sSO}, 7680")
    a("s_mov_b64 exec, -1")
a(f"s_sub_u32 s{sT0}, s{sWV}, 1")
a(f"s_mul_i32 s64, s{sT0}, {32*480 + 256}")
a(f"s_add_u32 s64, s64, {WPART}")
a(f"s_mul_i32 s65, s{sT0}, {32*3840}")
a("s_waitcnt lgkmcnt(0)")
srd(a, SRD_X, sX, sX + 1, 2048 * 1280)
srd(a, SRD_W, sWQ, sWQ + 1, 640 * 3840)
srd(a, SRD_G, sGW, sGW + 1, 1280)
a("s_barrier")
if OPT.get("gsolo"):
    for i in range(10): lds_set(F_LAND + 4 * i, 3); lds_set(F_LANB + 4 * i, 3)
    finish()
trace()
a(f"s_cmp_eq_u32 s{sWV}, 0")
a("s_cbranch_scc1 L_ld_x")
a(f"s_cmp_lg_u32 s{sWV}, 1")
a("s_cbranch_scc1 L_ld_w")
a(f"v_lshlrev_b32 v{vT0}, 4, v{vLANE}")
a(f"s_mov_b32 m0, {GW}")
a(f"buffer_load_dwordx4 v{vT0}, s[{SRD_G}:{SRD_G+3}], 0 offen lds")
a("s_mov_b64 exec, 0xffff")
a(f"buffer_load_dwordx4 v{vT0}, s[{SRD_G}:{SRD_G+3}], 0 offen offset:1024 lds")
a("s_mov_b64 exec, -1")
loader_loop("w", 16, issue_w)
a("s_branch L_ld_end")
loader_loop("x", 18, issue_x)
a.label("L_ld_end")
srd(a, SRD_O, sWO, sWO + 1, 640 * 1280)
a(f"s_mul_i32 s{sT0}, s{sCG}, 160")
for i in range(1, 5): t10(TT + i, 64 * i, f"s{sT0}", vT0)
a("s_waitcnt vmcnt(0)")
lds_add(F_LAND, vaddr=vLS)
trace()
a(f"s_cmp_eq_u32 s{sWV}, 1")
a("s_cbranch_scc1 L_wo1")
a(f"s_cmp_eq_u32 s{sWV}, 2")
a("s_cbranch_scc1 L_wo2")
def wo_regs(row0):
    a(f"s_mov_b32 s{sSO}, {1280*row0}")
    for i in range(25):
        a(f"buffer_load_dwordx4 {v(24+4*i,4)}, v{TT + i % 5}, s[{SRD_O}:{SRD_O+3}], s{sSO} offen")
        if i % 5 == 4: a(f"s_add_u32 s{sSO}, s{sSO}, 40960")
    a(f"v_lshlrev_b32 v22, 4, v{vLANE}")
    a(f"v_add_u32 v22, {160*row0}, v22")
def wo_flush():
    a("s_waitcnt vmcnt(0)")
    lds_add(F_A0D)
    lds_wait(F_CONS + 36, 9, sleep=0)
    for i in range(25):
        a(f"ds_write_b128 v22, {v(24+4*i,4)} offset:{1024*i}")
        if i >= 12: a("s_waitcnt lgkmcnt(8)")
if OPT["woreg"]:
    trace_at(14)
    wo_regs(0)
    a("s_branch L_wo_fl")
    a.label("L_wo1")
    lds_wait(F_CONS + 28, 9)
    trace_at(14)
    wo_load(320, 9, OPT["wodepth"])
    a("s_waitcnt vmcnt(0)")
    lds_add(F_A0D)
    a("s_branch L_wo_done")
    a.label("L_wo2")
    trace_at(14)
    wo_regs(160)
    lds_wait(F_CONS + 32, 9)
    wo_load(608, 1, None)
    xq_load()
    a.label("L_wo_fl")
    wo_flush()
else:
    lds_wait(F_CONS + 28, 9)
    trace_at(14)
    wo_load(320, 5, OPT["wodepth"])
    a("s_branch L_wo_b")
    a.label("L_wo1")
    lds_wait(F_CONS + 28, 9)
    trace_at(14)
    wo_load(480, 4, OPT["wodepth"])
    a("s_branch L_wo_b")
    a.label("L_wo2")
    lds_wait(F_CONS + 32, 9)
    trace_at(14)
    wo_load(608, 1, None)
    xq_load()
    a.label("L_wo_b")
    lds_wait(F_CONS + 36, 9, sleep=0)
    a(f"s_mul_i32 s{sT0}, s{sWV}, 96")
    a(f"s_mul_i32 m0, s{sT0}, 160")
    a(f"s_mul_i32 s{sSO}, s{sT0}, 1280")
    dma_rows(SRD_O, 3, None)
    a(f"s_cmp_lg_u32 s{sWV}, 2")
    a("s_cbranch_scc1 L_wo_done")
    dma_rows(SRD_O, 1, None)
a.label("L_wo_done")
a("s_waitcnt vmcnt(0)")
lds_add(F_WOL)
trace()
a(f"s_cmp_lt_u32 s{sWV}, 2")
a("s_cbranch_scc1 L_aux")
finish()

a.label("L_aload")
srd(a, SRD_O, sWO, sWO + 1, 640 * 1280)
a(f"s_mul_i32 s{sT0}, s{sCG}, 160")
for i in range(5): t10(TT + i, 64 * i, f"s{sT0}", vT0)

if OPT.get("gsolo"): finish()
a(f"s_cmp_eq_u32 s{sWV}, 1")
a("s_cbranch_scc1 L_ahelp")
SRD_K, SRD_V = 84, 80
srd(a, SRD_K, sK, sK + 1, 2048 * 1280)
srd(a, SRD_V, sV, sV + 1, 2048 * 1280)
if OPT["kvat"] > OPT["nb"] + 2: touch_pairs(OPT["kvat"])
trace()
a(f"s_sub_u32 s{sT0}, s{sXM}, {4*1280}")
a(f"s_mov_b32 m0, {KT}")
for i in range(5):
    a(f"v_add_u32 v{vT0}, s{sT0}, v{TT + i}")
    a(f"buffer_load_dwordx4 v{vT0}, s[{SRD_K}:{SRD_K+3}], 0 offen lds")
    a("s_add_u32 m0, m0, 1024")
a(f"s_add_u32 s{sSO}, s{sT0}, 40960")
dma_rows(SRD_K, 3, None)
a("s_mov_b32 exec_hi, 0xff")
a(f"buffer_load_dwordx4 v{TT}, s[{SRD_K}:{SRD_K+3}], s{sSO} offen lds")
a("s_mov_b64 exec, -1")
a("s_add_u32 m0, m0, 1024")
a(f"s_mov_b32 s{sSO}, s{sXM}")
dma_rows(SRD_V, 4, None)
lds_set(F_USC, 1, vt=vT1)
trace()
a("s_waitcnt vmcnt(0)")
lds_add(F_KVT, vt=vT1)
pp(4, 0)
trace()
a(f"v_mul_u32_u24 v{vT2}, 13108, v{vLANE}")
a(f"v_lshrrev_b32 v{vT2}, 16, v{vT2}")
a(f"v_mul_u32_u24 v{vT2}, 640, v{vT2}")
a(f"v_lshl_add_u32 v{vT2}, v{vLANE}, 7, v{vT2}")
a(f"s_mul_i32 s{sT0}, s{sJJ}, {40*1280}")
a(f"s_and_b32 s{sT1}, s{sXCD}, 1")
a(f"s_mul_i32 s{sT1}, s{sT1}, 640")
a(f"s_add_u32 s{sT0}, s{sT0}, s{sT1}")
lds_wait(F_CRDY, 10)
if OPT["wot"]:
    a("s_mov_b32 exec_hi, 0x3ffff")
    for i in range(4):
        a(f"buffer_load_dword v17, v{vT2}, s[{SRD_O}:{SRD_O+3}], s{sT0} offen")
        a(f"s_add_u32 s{sT0}, s{sT0}, {10*1280}")
    a("s_mov_b64 exec, -1")
wo_load(0, 17, OPT["wodepth"])
for i in range(15):
    a(f"buffer_load_dwordx4 {v(20+4*i,4)}, v{TT + i % 5}, s[{SRD_O}:{SRD_O+3}], s{sSO} offen")
    if i % 5 == 4: a(f"s_add_u32 s{sSO}, s{sSO}, 40960")
a(f"s_add_u32 s{sSO}, s{sXM}, {64*1280}")
for i in range(10):
    a(f"buffer_load_dwordx4 {v(80+4*i,4)}, v{TT + i % 5}, s[{SRD_X}:{SRD_X+3}], s{sSO} offen")
    if i % 5 == 4: a(f"s_add_u32 s{sSO}, s{sSO}, 40960")
a(f"v_lshlrev_b32 v{vT2}, 4, v{vLANE}")
a(f"v_add_u32 v{vT2}, {160*544}, v{vT2}")
a("s_waitcnt vmcnt(0)")
lds_set(F_A0D, 1)
trace()
lds_wait(F_CVD, 10, sleep=0)
for i in range(25):
    a(f"ds_write_b128 v{vT2}, {v(20+4*i,4)} offset:{1024*i}")
    if i >= 12: a("s_waitcnt lgkmcnt(8)")
a("s_waitcnt lgkmcnt(0)")
lds_set(F_WOL, 3)
trace()
finish()

a.label("L_ahelp")
a(f"v_lshlrev_b32 v{vT0}, 2, v{vLANE}")
a(f"v_add_u32 v{vT0}, {ZR}, v{vT0}")
a(f"v_mov_b32 v{vT1}, 0")
a(f"ds_write_b32 v{vT0}, v{vT1}")
def late_touch():
    if OPT["utlb"]:
        a(f"s_lshl_b32 s{sT0}, s2, 7")
        a(f"s_add_u32 s{sT0}, s{sT0}, 0x100000")
        a(f"v_lshl_add_u32 v{vT0}, v{vLANE}, 21, s{sT0}")
        a(f"v_mov_b32 v{vT1}, 0")
        a("s_mov_b64 exec, 3")
        a(f"global_atomic_or v{vT0}, v{vT1}, s[{sWS}:{sWS+1}] sc1")
        a("s_mov_b64 exec, -1")
    a(f"s_lshl_b32 s{sT0}, s{sCG}, 4")
    a(f"s_add_u32 s{sT0}, s{sT0}, s{sRB}")
    a(f"s_mul_i32 s{sT0}, s{sT0}, 20480")
    a(f"v_lshl_add_u32 v21, v{vLANE}, 7, s{sT0}")
    a(f"s_mov_b32 s{sTS}, {OPT['kvat']}")
    lds_wait(F_USC, 1, sleep=0)
    def ht():
        for i in range(3):
            if i == 2: a("s_mov_b64 exec, 0xffffffff")
            a(f"global_load_dword v22, v21, s[{sSSM}:{sSSM+1}]")
            a("v_add_u32 v21, 8192, v21")
        a("s_mov_b64 exec, -1")
    td = OPT["tdepth"] if OPT["tdepth"] >= 0 else None
    if OPT["hmode"] == 1:
        if OPT["hat"] <= OPT["kvat"]: ht()
        else: touch_pairs(OPT["hat"], td); ht()
    elif OPT["tdelay"]: a(f"s_sleep {OPT['tdelay']}")
    if OPT["tsplit"] > max(OPT["kvat"], OPT["hat"] if OPT["hmode"] == 1 else 0): touch_pairs(OPT["tsplit"], td)
    trace()
    lds_wait(F_CRDY, 10, sleep=2)
    if OPT["tsplit"] < 10: touch_pairs(10)
get_tag(late_touch)
tlb_touch()
trace()
lds_wait(F_A0D, 1, sleep=4)
lds_wait(F_CVD, OPT['ygate'], sleep=2)
a("s_branch L_tailhelp")

a.label("L_notloader")
a(f"s_cmp_lg_u32 s{sROLE}, 0")
a("s_cbranch_scc1 L_awave")
a(f"s_cmp_ge_u32 s{sWV}, 4")
a("s_cbranch_scc1 L_gwave")

NEG = 0xf149f2ca
CB_ = 8
a(f"v_mov_b32 v{vT3}, {hex(NEG)}")
a(f"v_lshlrev_b32 v{vT0}, 2, v{vG}")
a(f"v_sub_u32 v{vT0}, v{vN}, v{vT0}")
for r in range(4):
    a(f"v_subrev_u32 v{vT1}, {r}, v{vT0}")
    a(f"v_and_b32 v{vT1}, 0x80000001, v{vT1}")
    a(f"v_cmp_eq_u32 vcc, 0, v{vT1}")
    a(f"v_cndmask_b32 v{CB_+r}, v{vT3}, 0, vcc")
    a(f"v_cmp_eq_u32 vcc, 0x80000000, v{vT1}")
    a(f"v_cndmask_b32 v{CB_+4+r}, v{vT3}, 0, vcc")
a(f"v_and_b32 v{vT1}, 1, v{vN}")
a(f"v_lshlrev_b32 v{vT2}, 4, v{vT1}")
a(f"v_mov_b32 v{vT3}, 0xffff")
a(f"v_lshlrev_b32 v{vT3}, v{vT2}, v{vT3}")
a(f"v_sub_u32 v{vT1}, v{vT0}, v{vT1}")
a(f"v_cmp_le_i32 vcc, 0, v{vT1}")
a(f"v_cndmask_b32 v{CB_+8}, 0, v{vT3}, vcc")
a(f"v_cndmask_b32 v{CB_+10}, v{vT3}, 0, vcc")
a(f"v_cmp_le_i32 vcc, 2, v{vT1}")
a(f"v_cndmask_b32 v{CB_+9}, 0, v{vT3}, vcc")
a(f"v_cndmask_b32 v{CB_+11}, v{vT3}, 0, vcc")
a(f"v_lshlrev_b32 v{vT1}, 4, v{vLANE}")
a(f"v_add_u32 v{vT1}, {CT}, v{vT1}")
for i in range(3): a(f"ds_write_b128 v{vT1}, {v(CB_+4*i,4)} offset:{1024*i}")
a(f"v_mov_b32 v{vT2}, 0"); a(f"v_mov_b32 v{vT3}, 0")
a(f"v_lshlrev_b32 v{vT1}, 9, v{vG}")
a(f"v_add_u32 v{vT1}, {ZR}, v{vT1}")
a(f"ds_write_b64 v{vT1}, {v(vT2,2)}")
lds_set(F_CT, 1)
HX, HW, HG, HA = 64, 88, 112, 44
HR = 120
def gate_loop(n1, tag):
    L = f"L_hg_{tag}"
    a.label(L)
    a(f"v_add_u32 v26, s45, v22")
    a(f"v_add_u32 v28, s45, v23")
    a(f"v_add_u32 v30, s45, v24")
    a("v_xor_b32 v27, 64, v26")
    a("v_xor_b32 v29, 64, v28")
    lds_wait(F_LAND, 2, vaddr=25, sleep=2 if OPT["lowspin"] & 16 else 0)
    def wr(ks):
        for t in range(3):
            for e in range(2):
                a(f"ds_read_b64_tr_b16 {v(HW+12*ks+4*t+2*e,2)}, v30 offset:{(32*ks+4*e)*480 + 256*ks + 160*t}")
    def mm(ks):
        for i in range(2):
            for t in range(3): a(f"{MF} {v(HR+12*i+4*t,4)}, {v(HW+12*ks+4*t,4)}, {v(HX+12*ks+4*i,4)}, {v(HR+12*i+4*t,4)}")
        a(f"{MF} {v(HA,4)}, {v(HG+4*ks,4)}, {v(HX+12*ks+8,4)}, {v(HA,4)}")
    if OPT["hrem"]: wr(0)
    for ks in range(2):
        if OPT["hrem"]:
            for i in range(2): a(f"ds_read_b128 {v(HX+12*ks+4*i,4)}, v{26+ks} offset:{8192*(i+1)}")
        a(f"ds_read_b128 {v(HX+12*ks+8,4)}, v{28+ks}")
        a(f"ds_read_b128 {v(HG+4*ks,4)}, v21 offset:{64*ks}")
    a("s_waitcnt lgkmcnt(0)")
    if OPT["hrem"]:
        lds_add(F_CONA, vaddr=25)
        mm(0)
        lds_wait(F_LANB, 1, vaddr=25, sleep=0)
        wr(1)
        a("s_waitcnt lgkmcnt(0)")
        lds_add(F_CONS, vaddr=25)
        mm(1)
    else:
        lds_add(F_CONS, vaddr=25)
        for ks in range(2): a(f"{MF} {v(HA,4)}, {v(HG+4*ks,4)}, {v(HX+12*ks+8,4)}, {v(HA,4)}")
    a("v_add_u32 v25, 4, v25")
    a("v_add_u32 v21, 128, v21")
    a(f"s_add_u32 s45, s45, {SLOT}")
    a(f"s_cmp_eq_u32 s45, {3*SLOT}")
    a("s_cselect_b32 s45, 0, s45")
    a("s_add_u32 s43, s43, 1")
    a(f"s_cmp_lt_u32 s43, {n1}")
    a(f"s_cbranch_scc1 {L}")
a(f"v_lshrrev_b32 v{vT1}, 1, v{vN}")
a(f"v_xor_b32 v{vT1}, v{vT1}, v{vG}")
a(f"v_lshlrev_b32 v{vT1}, 4, v{vT1}")
a(f"v_lshl_add_u32 v22, v{vN}, 7, v{vT1}")
a(f"s_add_u32 s{sT0}, s{sCG}, 1")
a(f"s_lshl_b32 s{sT0}, s{sT0}, 11")
a(f"v_add_u32 v23, s{sT0}, v22")
a(f"v_bfe_u32 v{vT1}, v{vLANE}, 2, 2")
a(f"v_lshl_add_u32 v{vT1}, v{vG}, 3, v{vT1}")
a(f"v_mul_u32_u24 v{vT1}, 480, v{vT1}")
a(f"v_add_u32 v{vT2}, 1, v{vG}")
a(f"v_lshrrev_b32 v{vT2}, 1, v{vT2}")
a(f"v_lshl_add_u32 v{vT1}, v{vT2}, 7, v{vT1}")
a(f"v_and_b32 v{vT2}, 3, v{vLANE}")
a(f"v_mul_u32_u24 v{vT2}, 40, v{vT2}")
a(f"v_add_u32 v{vT1}, v{vT1}, v{vT2}")
a(f"v_add_u32 v24, {WPART + 32}, v{vT1}")
a(f"v_mov_b32 v25, v{vFL}")
a(f"v_lshlrev_b32 v21, 4, v{vG}")
a(f"v_add_u32 v21, {GW}, v21")
for r in list(range(HA, HA + 4)) + list(range(HR, HR + 24)): a(f"v_mov_b32 v{r}, 0")
a("s_mov_b32 s43, 0"); a("s_mov_b32 s45, 0")
a("s_setprio 3")
get_tag(lambda: gate_loop(5, "a"))
gate_loop(10, "b")
if OPT["hrem"]:
    a(f"v_lshlrev_b32 v26, 3, v{vLANE}")
    a(f"v_add_u32 v26, {EX}, v26")
    lds_wait(F_CONS + 32, 9, sleep=0)
    for i in range(2):
        for t in range(3):
            pack(HX + 2 * (3 * i + t), HR + 12 * i + 4 * t)
            a(f"ds_write_b64 v26, {v(HX+2*(3*i+t),2)} offset:{(9*t + 4*(i+1))*512}")
    lds_add(F_EXW)
tlb_touch()
a(f"v_cvt_pk_bf16_f32 v{vT2}, v44, v44")
a(f"v_and_b32 v{vT2}, 0xffff0000, v{vT2}")
a(f"v_mul_f32 v{vT2}, 0xbfb8aa3b, v{vT2}")
a(f"v_exp_f32 v{vT2}, v{vT2}")
a(f"v_add_f32 v{vT2}, 1.0, v{vT2}")
a(f"v_rcp_f32 v{vT2}, v{vT2}")
a(f"v_cvt_pk_bf16_f32 v{vT2}, v{vT2}, v{vT2}")
a(f"v_and_b32 v{vT3}, 0xffff0000, v{vT2}")
a(f"v_mov_b32 v{vT2}, s{sTAG}")
a(f"s_lshl_b32 s{sT0}, s{sRB}, 3")
a(f"s_add_u32 s{sT0}, s{sT0}, s{sCG}")
a(f"s_lshl_b32 s{sT0}, s{sT0}, 7")
a(f"s_add_u32 s{sT0}, s{sT0}, {GWS}")
a(f"v_lshl_add_u32 v{vT1}, v{vLANE}, 3, s{sT0}")
a("s_mov_b64 exec, 0xffff")
a(f"global_store_dwordx2 v{vT1}, {v(vT2,2)}, s[{sWS}:{sWS+1}] sc1")
a("s_mov_b64 exec, -1")
trace()
if OPT.get("gsolo"): finish()
lds_wait(F_A0D if OPT["woreg"] else F_WOL, 3)
a.label("L_tailhelp")
a(f"s_lshl_b32 s{sT0}, s{sRB}, 1")
a(f"s_add_u32 s{sT0}, s{sT0}, s{sROLE}")
a(f"s_lshl_b32 s{sT0}, s{sT0}, 9")
a(f"s_add_u32 s{sT0}, s{sT0}, {GWS}")
a(f"v_lshl_add_u32 v14, v{vLANE}, 3, s{sT0}")
a(f"v_lshl_add_u32 v13, v{vLANE}, 2, v{vFL}")
my_block(sT0)
a(f"v_lshl_add_u32 v12, v{vLANE}, 3, s{sT0}")
a(f"v_lshlrev_b32 v11, 3, v{vLANE}")
a(f"v_add_u32 v11, {HGO}, v11")
a("v_mov_b32 v16, 0"); a("v_mov_b32 v17, 0")
a(f"s_and_b32 s41, s{sTAG}, 0xffffff00")
a("s_add_u32 s41, s41, 0x1000")
a("s_mov_b32 s40, 0x3ff")
a("s_mov_b32 s42, 0")
a("s_mov_b32 s44, 0")
a(f"s_mov_b32 s{sSPIN}, 0")
KP = OPT["kpoll"]
def cpoll(k):
    a("s_mov_b64 exec, 0x3ff")
    a(f"global_atomic_or_x2 {v(20+2*k,2)}, v12, v[16:17], s[{sWS}:{sWS+1}] sc0 sc1")
def gwrite():
    a("v_sub_f32 v18, 1.0, v19")
    a(f"ds_write_b32 v13, v19 offset:{GOM - FL + 256}")
    a(f"ds_write_b32 v13, v18 offset:{GOM - FL}")
    lds_add(F_GRD)
a(f"global_load_dwordx2 v[18:19], v14, s[{sWS}:{sWS+1}] sc1")
for k in range(KP - 1):
    cpoll(k)
    a(f"s_sleep {OPT['kgap']}")
a("s_mov_b64 exec, -1")
a(f"s_waitcnt vmcnt({KP - 1})")
a(f"v_cmp_ne_u32 vcc, s{sTAG}, v18")
a("s_cbranch_vccnz L_tp")
gwrite()
a("s_mov_b32 s44, 1")
a.label("L_tp")
for k in range(KP):
    nx = a.newlabel("Ltn")
    cpoll((k + KP - 1) % KP)
    r = 20 + 2 * k
    a(f"s_waitcnt vmcnt({KP - 1})")
    a(f"v_and_b32 v{r+1}, 0xffffff00, v{r+1}")
    a(f"v_cmp_eq_u32 vcc, s41, v{r+1}")
    a(f"v_mov_b32 v{r+1}, 1")
    a("s_add_u32 s42, s42, 1")
    a(f"s_cmp_lt_u32 s42, {SPIN_MAX}")
    a("s_cselect_b32 s43, vcc_lo, 0x3ff")
    a("s_and_b32 s43, s43, s40")
    a(f"s_cbranch_scc0 {nx}")
    a("s_mov_b32 exec_lo, s43")
    a(f"ds_write_b64 v11, {v(r,2)}")
    trace()
    a("s_andn2_b32 s40, s40, s43")
    a("s_cbranch_scc0 L_tpd")
    a.label(nx)
a("s_branch L_tp")
a.label("L_tpd")
a("s_mov_b64 exec, -1")
a("s_cmp_lg_u32 s44, 0")
a("s_cbranch_scc1 L_gdone")
a.label("L_gchk")
a(f"global_load_dwordx2 v[18:19], v14, s[{sWS}:{sWS+1}] sc1")
a("s_waitcnt vmcnt(0)")
a(f"v_cmp_ne_u32 vcc, s{sTAG}, v18")
a("s_cbranch_vccz L_gok")
a("s_sleep 8")
a(f"s_add_u32 s{sSPIN}, s{sSPIN}, 1")
a(f"s_cmp_lt_u32 s{sSPIN}, {SPIN_MAX}")
a("s_cbranch_scc1 L_gchk")
a.label("L_gok")
gwrite()
a.label("L_gdone")
a("s_waitcnt vmcnt(0)")
a("s_cmp_lg_u32 s2, 0")
a("s_cbranch_scc1 L_th_exit")
a(f"v_lshlrev_b32 v8, 4, v{vLANE}")
a(f"v_add_u32 v8, {FSUM}, v8")
a(f"v_lshlrev_b32 v9, 10, v{vLANE}")
a(f"v_add_u32 v9, {FB + 120}, v9")
a("v_mov_b32 v10, 0")
a(f"s_mov_b32 s{sSPIN}, 0")
a.label("L_ep")
for j in range(4): a(f"global_atomic_or v{12+j}, v9, v10, s[{sWS}:{sWS+1}] offset:{256*j} sc0 sc1")
a("s_waitcnt vmcnt(0)")
a(f"v_cmp_ne_u32 vcc, s{sTAG}, v12")
for j in range(1, 4):
    a(f"v_cmp_ne_u32 s[62:63], s{sTAG}, v{12+j}")
    a("s_or_b64 vcc, vcc, s[62:63]")
a("s_cbranch_vccz L_epd")
a("s_sleep 2")
a(f"s_add_u32 s{sSPIN}, s{sSPIN}, 1")
a(f"s_cmp_lt_u32 s{sSPIN}, {SPIN_MAX}")
a("s_cbranch_scc1 L_ep")
a.label("L_epd")
a(f"s_mov_b32 s{sT0}, {EPOCH}")
flag_store(sT0)
if OPT.get("probe"):
    a(f"global_load_dwordx4 v[12:15], v8, s[{sWS}:{sWS+1}] offset:1024 sc1")
    a("s_waitcnt vmcnt(0)")
    for j in range(4): a(f"v_subrev_u32 v{12+j}, s72, v{12+j}")
    a("v_min3_i32 v16, v12, v13, v14"); a("v_min_i32 v16, v16, v15")
    a("v_max3_i32 v17, v12, v13, v14"); a("v_max_i32 v17, v17, v15")
    a("s_mov_b32 s50, 0"); a("s_mov_b32 s51, 0")
    for l in range(64):
        a(f"v_readlane_b32 s52, v16, {l}"); a(f"v_readlane_b32 s53, v17, {l}")
        a("s_min_i32 s50, s50, s52"); a("s_max_i32 s51, s51, s53")
    a("s_sub_u32 s51, s51, s50")
    a("s_add_u32 s50, s50, s72")
    a(f"s_mul_i32 s51, s51, {4 if OPT['probe'] == 2 else 0}")
    a("s_add_u32 s50, s50, s51")
    if OPT.get("pp"):
        a("s_add_u32 s55, s50, 2500")
        a.label("L_probe0")
        a("s_memrealtime s[52:53]"); a("s_waitcnt lgkmcnt(0)")
        a("s_sub_u32 s54, s52, s55"); a("s_cmp_lt_i32 s54, 0"); a("s_cbranch_scc1 L_probe0")
        a(f"global_load_dwordx4 v[12:15], v8, s[{sWS}:{sWS+1}] offset:2048 sc1")
        a("s_waitcnt vmcnt(0)")
        for j in range(4): a(f"v_subrev_u32 v{12+j}, s50, v{12+j}")
        if OPT.get("pmax"):
            a("v_max3_u32 v16, v12, v13, v14"); a("v_max_u32 v16, v16, v15")
        else:
            a("v_add3_u32 v16, v12, v13, v14"); a("v_add_u32 v16, v16, v15")
        a("s_mov_b32 s51, 0")
        for l in range(32):
            a(f"v_readlane_b32 s52, v16, {l + 32 * OPT.get('prole', 0)}")
            a("s_max_u32 s51, s51, s52" if OPT.get("pmax") else "s_add_u32 s51, s51, s52")
        a("s_lshl_b32 s51, s51, 1" if OPT.get("pmax") else "s_lshr_b32 s51, s51, 6")
        a("s_min_u32 s51, s51, 10000")
        a("s_add_u32 s50, s50, s51")
    a("s_add_u32 s50, s50, 3000")
    a.label("L_probe")
    a("s_memrealtime s[52:53]"); a("s_waitcnt lgkmcnt(0)")
    a("s_sub_u32 s54, s52, s50"); a("s_cmp_lt_i32 s54, 0"); a("s_cbranch_scc1 L_probe")
a.label("L_th_exit")
finish()

a.label("L_gwave")
a(f"s_setprio {OPT['prioG']}")
sGWV, sNQ, sMH, sIT, sST, sSLOT = 40, 41, 42, 43, 44, 45
vL8, vTRA, vQZ, vCT, vOMA, vOXA, vCEL = 160, 161, 162, 163, 164, 165, 166
vEXW, vBND, vRAW = 155, 156, 157
sOB, sSC, sEXW, sBND, sRAW, sO2 = 51, 52, 48, 49, 50, 54
def ATT_SETUP():
    a(f"v_lshlrev_b32 v{vL8}, 3, v{vLANE}")
    a(f"s_lshl_b32 s{sRAW}, s{sMH}, 11")
    a(f"s_add_u32 s{sRAW}, s{sRAW}, {EX}")
    a(f"s_lshl_b32 s{sBND}, s{sNQ}, 10")
    a(f"s_add_u32 s{sBND}, s{sBND}, {EXB}")
    a(f"s_mul_i32 s{sT0}, s{sNQ}, {9*512}")
    a(f"s_mul_i32 s{sT1}, s{sMH}, {5*512}")
    a(f"s_add_u32 s{sT0}, s{sT0}, s{sT1}")
    a(f"s_lshl_b32 s{sT1}, s{sMH}, 11")
    a(f"s_add_u32 s{sT1}, s{sT1}, {4*512}")
    a(f"s_cmp_eq_u32 s{sNQ}, 3")
    a(f"s_cselect_b32 s{sT0}, s{sT1}, s{sT0}")
    a(f"s_add_u32 s{sEXW}, s{sT0}, {EX}")
    a(f"s_lshl_b32 s{sT1}, s{sNQ}, 7")
    a(f"s_add_u32 s{sT0}, s{sRAW}, s{sT1}")
    a(f"v_lshrrev_b32 v{vT2}, 2, v{vLANE}")
    a(f"v_lshl_add_u32 v{vTRA}, v{vT2}, 3, s{sT0}")
    a(f"v_lshlrev_b32 v{vCT}, 4, v{vLANE}")
    a(f"v_add_u32 v{vCT}, {CT}, v{vCT}")
    a(f"v_mov_b32 v{vT2}, {ZR - 512}")
    a(f"v_add_u32 v{vT1}, s{sRAW}, v{vL8}")
    a(f"v_cmp_eq_u32 vcc, s{sNQ}, v{vG}")
    a(f"v_cndmask_b32 v{vQZ}, v{vT2}, v{vT1}, vcc")
    a(f"s_lshl_b32 s{sT0}, s{sRB}, 1")
    a(f"s_add_u32 s{sT0}, s{sT0}, s{sMH}")
    a(f"s_mul_i32 s{sOB}, s{sT0}, {4*20480}")
    a(f"s_mul_i32 s{sT1}, s{sCG}, 2560")
    a(f"s_add_u32 s{sOB}, s{sOB}, s{sT1}")
    a(f"s_add_u32 s{sOB}, s{sOB}, {OWS}")
    a(f"s_lshl_b32 s{sT0}, s{sNQ}, 9")
    a(f"s_add_u32 s{sT0}, s{sT0}, s{sOB}")
    a(f"v_and_b32 v{vT1}, 31, v{vLANE}")
    a(f"v_lshl_add_u32 v{vT1}, v{vT1}, 4, s{sT0}")
    a(f"v_lshrrev_b32 v{vT2}, 5, v{vLANE}")
    a(f"v_mul_u32_u24 v{vT2}, 20480, v{vT2}")
    a(f"v_add_u32 v{vOMA}, v{vT1}, v{vT2}")
    a(f"s_add_u32 s{sO2}, s{sWS}, {2*20480}")
    a(f"s_addc_u32 s{sO2+1}, s{sWS+1}, 0")
    a(f"s_add_u32 s56, s{sWS}, {OLOC}")
    a(f"s_addc_u32 s57, s{sWS+1}, 0")
    a(f"s_add_u32 s58, s{sWS}, {OLOC + 2*20480}")
    a(f"s_addc_u32 s59, s{sWS+1}, 0")
    a(f"s_lshl_b32 s{sT0}, s{sNQ}, 7")
    a(f"s_add_u32 s{sT0}, s{sT0}, s{sOB}")
    a(f"v_lshl_add_u32 v{vT1}, v{vN}, 3, s{sT0}")
    a(f"v_bfrev_b32 v{vT3}, v{vG}")
    a(f"v_lshrrev_b32 v{vT3}, 30, v{vT3}")
    a(f"v_mul_u32_u24 v{vT2}, 20480, v{vT3}")
    a(f"v_add_u32 v{vOXA}, v{vT1}, v{vT2}")
    a(f"s_lshl_b32 s{sT0}, s{sMH}, 15")
    a(f"s_lshl_b32 s{sT1}, s{sRB}, 11")
    a(f"s_add_u32 s{sT0}, s{sT0}, s{sT1}")
    a(f"s_and_b32 s{sT1}, s{sCG}, 4")
    a(f"s_lshl_b32 s{sT1}, s{sT1}, 3")
    a(f"s_add_u32 s{sT0}, s{sT0}, s{sT1}")
    a(f"s_add_u32 s{sT0}, s{sT0}, {FB}")
    a(f"v_lshl_add_u32 v{vCEL}, v{vT3}, 3, s{sT0}")
    a(f"v_lshl_add_u32 v{vCEL}, v{vN}, 8, v{vCEL}")
    a(f"s_mov_b32 s{sCM}, 0xff00ff"); a(f"s_mov_b32 s{sCM+1}, 0xff00ff")
    a(f"s_mov_b32 s{sSC}, {hex(f2u((20 ** -0.5) * math.log2(math.e)))}")
ACC = 8
ACR = 68
XF = 84
WF = 104
vXB, vWB = 152, 153
vXA, vWA = 155, 157
vSY = 159
NCONS = 9
a(f"s_sub_u32 s{sGWV}, s{sWV}, 4")
a(f"s_and_b32 s{sNQ}, s{sGWV}, 3")
a(f"s_lshr_b32 s{sMH}, s{sGWV}, 2")
a(f"v_lshrrev_b32 v{vT1}, 1, v{vN}")
a(f"v_xor_b32 v{vT1}, v{vT1}, v{vG}")
a(f"v_lshlrev_b32 v{vT1}, 4, v{vT1}")
a(f"v_lshl_add_u32 v{vXB}, v{vN}, 7, v{vT1}")
a(f"s_mul_i32 s{sT0}, s{sMH}, {5*2048}")
a(f"v_add_u32 v{vXB}, s{sT0}, v{vXB}")
a(f"v_bfe_u32 v{vT1}, v{vLANE}, 2, 2")
a(f"v_lshl_add_u32 v{vT1}, v{vG}, 3, v{vT1}")
a(f"v_mul_u32_u24 v{vT1}, 480, v{vT1}")
a(f"v_add_u32 v{vT2}, 1, v{vG}")
a(f"v_lshrrev_b32 v{vT2}, 1, v{vT2}")
a(f"v_lshl_add_u32 v{vT1}, v{vT2}, 7, v{vT1}")
a(f"v_and_b32 v{vT2}, 3, v{vLANE}")
a(f"s_mul_i32 s{sT0}, s{sNQ}, 40")
a(f"s_add_u32 s{sT0}, s{sT0}, {WPART}")
a(f"v_lshl_add_u32 v{vT3}, v{vT2}, 3, v{vT1}")
a(f"v_add_u32 v{vWB}, s{sT0}, v{vT3}")
a(f"s_mul_i32 s{sT0}, s{sNQ}, 160")
a(f"s_cmp_eq_u32 s{sNQ}, 3")
a(f"s_cselect_b32 s{sT0}, 0, s{sT0}")
a(f"s_add_u32 s{sT0}, s{sT0}, {WPART + 32}")
a(f"v_mul_u32_u24 v{vT3}, 40, v{vT2}")
a(f"v_add3_u32 v{vWB+1}, v{vT3}, v{vT1}, s{sT0}")
for r in range(ACC, ACC + 76): a(f"v_mov_b32 v{r}, 0")
a(f"s_mov_b32 s{sIT}, 0")
a(f"s_mov_b32 s{sSLOT}, 0")
a(f"v_mov_b32 v{vSY}, v{vFL}")
a(f"v_mov_b32 v{vXA}, v{vXB}")
a(f"v_xor_b32 v{vXA+1}, 64, v{vXB}")
a(f"v_mov_b32 v{vWA}, v{vWB}")
a(f"v_mov_b32 v{vWA+1}, v{vWB+1}")
ATT_SETUP()
read_tag()
trace_at(0)

def emit_cyclic(seq):
    n = len(seq); out_cnt = 99
    for i, it in enumerate(seq):
        if it[0] == "t": it[1](); continue
        if it[0] == "r":
            if out_cnt >= 14:
                a("s_waitcnt lgkmcnt(12)"); out_cnt = 12
            a(it[1]); out_cnt += 1
            continue
        best = None; cnt = 0
        for back in range(1, n + 1):
            p = seq[(i - back) % n]
            if p[0] == "r":
                if p[2] in it[2]:
                    best = cnt; break
                cnt += 1
        assert best is not None
        if best < out_cnt:
            w = min(best, 15)
            a(f"s_waitcnt lgkmcnt({w})"); out_cnt = w
        a(it[1])

def gemm_loop(nm, special, tag):
    L = f"L_gemm_{tag}"
    nw = (3 if OPT['hrem'] else 6) if special else 4
    def wreads(ks):
        out = []
        for t in range(nw):
            for e in range(2):
                off = (32*ks+4*e)*480 + 256*ks + 160 * (t if t < 3 else t - 3)
                out.append(("r", f"ds_read_b64_tr_b16 {v(WF+24*ks+4*t+2*e,2)}, v{vWA+(t>=3)} offset:{off}", ("W", t, ks)))
        return out
    def xread(m, ks): return ("r", f"ds_read_b128 {v(XF+4*m,4)}, v{vXA+ks} offset:{2048*m}", ("X", m, ks))
    if OPT["la"]:
        a.label(f"{L}0")
        lds_wait(F_LAND, 2, sleep=0)
        trace()
        pro = [xread(0, 0)] + wreads(0) + [xread(m, 0) for m in range(1, nm)]
        for i, r in enumerate(pro):
            a(r[1])
            if i == 12: a("s_waitcnt lgkmcnt(8)")
        a("s_waitcnt lgkmcnt(0)")
        def boundary():
            a(f"v_readfirstlane_b32 s{sT2}, v{vT3}")
            a(f"s_cmp_lt_u32 s{sT3}, 2")
            a(f"s_cbranch_scc1 {L}_slow")
            a.label(f"{L}_back")
            trace()
            a(f"s_add_u32 s{sSLOT}, s{sSLOT}, {SLOT}")
            a(f"s_cmp_eq_u32 s{sSLOT}, {3*SLOT}")
            a(f"s_cselect_b32 s{sSLOT}, 0, s{sSLOT}")
            a(f"v_add_u32 v{vXA}, s{sSLOT}, v{vXB}")
            a(f"v_add_u32 v{vWA}, s{sSLOT}, v{vWB}")
            a(f"v_add_u32 v{vWA+1}, s{sSLOT}, v{vWB+1}")
            a(f"v_xor_b32 v{vXA+1}, 64, v{vXA}")
            a(f"s_setprio {OPT['pB']}")
            lastp(OPT["lastp"] - 1)
        def lastp(n):
            if nm == 5 and OPT["lastp"]:
                lb = a.newlabel("Llp")
                a(f"s_cmp_lt_u32 s{sIT}, {n}")
                a(f"s_cbranch_scc1 {lb}")
                a("s_setprio 3")
                a.label(lb)
        def top():
            a(f"v_readfirstlane_b32 s{sT3}, v{vT3}")
            a(f"s_cmp_lt_u32 s{sT3}, 1")
            a(f"s_cbranch_scc1 {L}_slow2")
            a.label(f"{L}_back2")
            hi = a.newlabel("Lhi")
            a(f"s_setprio {OPT['pA']}")
            a(f"s_cmp_ge_u32 s{sT1}, {NCONS}")
            a(f"s_cbranch_scc1 {hi}")
            a("s_setprio 0")
            a.label(hi)
            lastp(OPT["lastp"])
        a(f"v_mov_b32 v{vT2}, {NCONS}")
        a(f"v_mov_b32 v{vT3}, 0")
        seq = [("m", f"v_mov_b32 v{vT0}, 1\ns_mov_b64 exec, 1", [("W", t, 0) for t in range(nw)]),
               ("r", f"ds_add_u32 v{vSY}, v{vT0} offset:{F_CONA}\ns_mov_b64 exec, -1", ("C2",)),
               ("m", f"v_readfirstlane_b32 s{sT1}, v{vT2}", [("G",)]), ("t", top)]
        for ks in range(2):
            pend = wreads(1 - ks)
            cnt = 0
            for m in range(nm):
                for t in range(nw):
                    if t == 0 and nm == 5 and m == 0: continue
                    if t >= 3 and (m == nm - 1) != special: continue
                    acc = ACC + 20 * t + 4 * m if t < 3 else ACR + 4 * (t - 3 if special else m)
                    w_, x_ = v(WF+24*ks+4*t,4), v(XF+4*m,4)
                    seq.append(("m", f"{MF} {v(acc,4)}, {x_ if t == 2 else w_}, {w_ if t == 2 else x_}, {v(acc,4)}", [("W", t, ks), ("X", m, ks)]))
                    cnt += 1
                    if ks == 1 and cnt < OPT["econs"]: pass
                    elif ks == 1 and cnt == OPT["econs"]:
                        seq.append(("m", f"v_mov_b32 v{vT0}, 1\ns_mov_b64 exec, 1", [("X", nm - 1, 1)]))
                        seq.append(("r", f"ds_add_u32 v{vSY}, v{vT0} offset:{F_CONS}\ns_mov_b64 exec, -1\nv_add_u32 v{vSY}, 4, v{vSY}", ("C",)))
                        seq.append(("m", f"v_readfirstlane_b32 s{sT3}, v{vT2}", [("F",)]))
                        seq.append(("t", boundary))
                    else:
                        for _ in range(2 if ks == 1 and len(pend) > 6 else 1):
                            if pend: seq.append(pend.pop(0))
                if ks == 0 and m == nm - 1:
                    seq.append(("r", f"ds_read2_b32 {v(vT2,2)}, v{vSY} offset0:{F_LAND//4 + 1} offset1:{F_CONS//4 - 1}", ("F",)))
                if ks == 1 and m == nm - 2:
                    seq.append(("r", f"ds_read2_b32 {v(vT2,2)}, v{vSY} offset0:{F_CONS//4 - 1} offset1:{F_LANB//4}", ("G",)))
                if ks == 1 and cnt < OPT["econs"]: pend.insert(0, xread(m, 0))
                else: seq.append(xread(m, 1 - ks))
            while pend: seq.append(pend.pop(0))
        a.label(L)
        emit_cyclic(seq)
    else:
        a.label(f"{L}0")
        a.label(L)
        l = a.newlabel("Lw"); d = a.newlabel("Lwd"); hi = a.newlabel("Lhi")
        a(f"s_mov_b32 s{sSPIN}, 0")
        a.label(l)
        a(f"ds_read2_b32 {v(vT0,2)}, v{vSY} offset0:{F_LAND//4} offset1:{F_CONS//4 - 1}")
        a("s_waitcnt lgkmcnt(0)")
        a(f"v_readfirstlane_b32 s{sT3}, v{vT0}")
        a(f"v_readfirstlane_b32 s{sT2}, v{vT1}")
        a(f"s_cmp_ge_u32 s{sT3}, 3")
        a(f"s_cbranch_scc1 {d}")
        a(f"s_add_u32 s{sSPIN}, s{sSPIN}, 1")
        a(f"s_cmp_lt_u32 s{sSPIN}, {SPIN_MAX}")
        a(f"s_cbranch_scc1 {l}")
        a.label(d)
        a("s_setprio 2")
        a(f"s_cmp_ge_u32 s{sT2}, {NCONS}")
        a(f"s_cbranch_scc1 {hi}")
        a("s_setprio 1")
        a.label(hi)
        trace()
        reads, gate, work, idx, lastuse = [], [], [], {}, {}
        def addr(r, g):
            reads.append(r[1]); gate.append(g); idx[r[2]] = len(reads) - 1
        addr(xread(0, 0), -1)
        for r in wreads(0): addr(r, -1)
        for m in range(1, nm): addr(xread(m, 0), -1)
        for r in wreads(1): addr(r, -1)
        for ks in range(2):
            for m in range(nm):
                if ks == 1: addr(xread(m, 1), lastuse[m])
                for t in range(nw):
                    if t == 0 and nm == 5 and m == 0: continue
                    if t >= 3 and (m == nm - 1) != special: continue
                    acc = ACC + 20 * t + 4 * m if t < 3 else ACR + 4 * (t - 3 if special else m)
                    w_, x_ = v(WF+24*ks+4*t,4), v(XF+4*m,4)
                    work.append((max(idx[("W", t, ks)], idx[("X", m, ks)]), f"{MF} {v(acc,4)}, {x_ if t == 2 else w_}, {w_ if t == 2 else x_}, {v(acc,4)}"))
                lastuse[m] = len(work) - 1
        hm = len(work) // 2
        if OPT["lag"] == 2: work[hm] = (work[hm][0], "s_setprio 2\n" + work[hm][1])
        j = hm + OPT["econs"]
        adv = (f"v_add_u32 v{vSY}, 4, v{vSY}\ns_add_u32 s{sSLOT}, s{sSLOT}, {SLOT}\ns_cmp_eq_u32 s{sSLOT}, {3*SLOT}\ns_cselect_b32 s{sSLOT}, 0, s{sSLOT}\n"
               f"v_add_u32 v{vXA}, s{sSLOT}, v{vXB}\nv_add_u32 v{vWA}, s{sSLOT}, v{vWB}\nv_add_u32 v{vWA+1}, s{sSLOT}, v{vWB+1}\nv_xor_b32 v{vXA+1}, 64, v{vXA}")
        work[j] = (len(reads) - 1, lds_add_txt(F_CONS, vaddr=vSY) + "\n" + work[j][1] + "\n" + adv + ("\ns_setprio 0" if OPT["lag"] == 3 else ""))
        lds_pipe(reads, work, gate)
    a(f"s_add_u32 s{sIT}, s{sIT}, 1")
    a(f"s_cmp_lt_u32 s{sIT}, 10")
    a(f"s_cbranch_scc1 {L}")
    a("s_waitcnt lgkmcnt(0)")
    trace()
    if OPT.get("gsolo"): finish()
    a(f"v_add_u32 v{vEXW}, s{sEXW}, v{vL8}")
    a(f"v_add_u32 v{vBND}, s{sBND}, v{vL8}")
    a(f"v_add_u32 v{vRAW}, s{sRAW}, v{vL8}")
    a(f"s_cmp_ge_u32 s{sT2}, {NCONS}")
    a(f"s_cbranch_scc1 {L}_ex")
    lds_wait(F_CONS + 32, NCONS, sleep=0)
    a.label(f"{L}_ex")
    off = 0 if nm == 5 else 1
    for i in range((nw - 3) if special else nm - 1):
        pack(PKX + 2 * i, ACR + 4 * i)
        a(f"ds_write_b64 v{vEXW}, {v(PKX+2*i,2)} offset:{9*512*i if special else 512*i}")
    if nm == 5:
        pack(KOP + 16, ACC + 20 + 16); pack(VM, ACC + 40 + 16)
        a(f"ds_write_b64 v{vBND}, {v(KOP+16,2)}")
        a(f"ds_write_b64 v{vBND}, {v(VM,2)} offset:512")
    lds_add(F_EXW)
    if nm == 5 and OPT["exsplit"]: lds_add(F_OST)
    for m in range(nm):
        j = m + off
        if j >= 1: pack(QOP + 4 * (j - 1), ACC + 4 * m)
    for i in range(3): a(f"ds_read_b128 {v(BO+4*i,4)}, v{vCT} offset:{1024*i}")
    for m in range(nm):
        j = m + off
        if not (nm == 5 and m == 4): pack(KOP + 4 * j, ACC + 20 + 4 * m)
    for m in range(nm):
        j = m + off
        if not (nm == 5 and m == 4): pack(VM + 2 * (4 - j), ACC + 40 + 4 * m)
    a("s_branch L_exdone")
    if OPT["la"]:
        a.label(f"{L}_slow")
        lds_wait(F_LAND, 2, vaddr=vSY, sleep=0)
        a(f"s_branch {L}_back")
        a.label(f"{L}_slow2")
        lds_wait(F_LANB, 1, vaddr=vSY, sleep=0)
        a(f"s_branch {L}_back2")

PKX, KOP, QOP, VM, VXX = 88, 98, 118, 134, 144
BO, BP, MK, BF = 8, 12, 16, 20
a(f"s_cmp_eq_u32 s{sGWV}, 3")
a("s_cbranch_scc1 L_gemm_5s0")
a(f"s_cmp_eq_u32 s{sGWV}, 7")
a("s_cbranch_scc1 L_gemm_4s0")
a(f"s_cmp_lg_u32 s{sMH}, 0")
a("s_cbranch_scc1 L_gemm_4n0")
gemm_loop(5, False, "5n")
gemm_loop(5, True, "5s")
gemm_loop(4, True, "4s")
gemm_loop(4, False, "4n")
a.label("L_exdone")
if OPT.get("attp") is not None: a(f"s_setprio {OPT['attp']}")
pp(2, 8)
SO, SP = 24, 40
LA, LB, M = 56, 60, 64
PP, OM, OX, OPK, XP = 68, 24, 40, 56, 84
if OPT["exsplit"]:
    a(f"s_cmp_eq_u32 s{sMH}, 0")
    a(f"s_cselect_b32 s{sT0}, {F_OST - F_EXW}, 0")
    a(f"s_cselect_b32 s{sT1}, 4, 8")
    a(f"v_add_u32 v{vT1}, s{sT0}, v{vFL}")
    lds_wait(F_EXW, f"s{sT1}", vaddr=vT1, sleep=0)
else: lds_wait(F_EXW, 9 if OPT['hrem'] else 8, sleep=0)
trace()
a(f"s_cmp_eq_u32 s{sMH}, 0")
a("s_cbranch_scc1 L_nobnd")
a(f"ds_read_b64 {v(KOP,2)}, v{vBND}")
a(f"ds_read_b64 {v(VM+8,2)}, v{vBND} offset:512")
a.label("L_nobnd")
a(f"ds_read_b64 {v(KOP+2,2)}, v{vRAW} offset:{9*512}")
for i in range(4):
    a(f"ds_read_b64 {v(QOP+4*i+2,2)}, v{vQZ} offset:{512*(i+1)}")
    a(f"ds_read_b64 {v(KOP+4*(i+1)+2,2)}, v{vRAW} offset:{(9+i+1)*512}")
a(f"s_or_b32 s{sT0}, s{sRB}, s{sMH}")
a(f"s_cmp_eq_u32 s{sT0}, 0")
a(f"s_cselect_b32 s{sT0}, {hex(NEG)}, 0")
for r in range(4): a(f"v_add_f32 v{BF+r}, s{sT0}, v{BP+r}")
for i in range(4):
    a(f"s_waitcnt lgkmcnt({6-2*i})")
    a(f"{MF} {v(SO+4*i,4)}, {v(KOP+4*(i+1),4)}, {v(QOP+4*i,4)}, {v(BO,4)}")
    a(f"{MF} {v(SP+4*i,4)}, {v(KOP+4*i,4)}, {v(QOP+4*i,4)}, {v(BF if i == 0 else BP,4)}")
for j in range(5): a(f"ds_read_b64_tr_b16 {v(VXX+2*(4-j),2)}, v{vTRA} offset:{(18+j)*512}")
for h in range(4):
    a(f"v_max3_f32 v{LA+h}, v{SO+4*h}, v{SO+4*h+1}, v{SP+4*h}")
    a(f"v_max3_f32 v{LB+h}, v{SO+4*h+2}, v{SO+4*h+3}, v{SP+4*h+2}")
    a(f"v_max_f32 v{LA+h}, v{LA+h}, v{SP+4*h+1}")
    a(f"v_max_f32 v{LB+h}, v{LB+h}, v{SP+4*h+3}")
    a(f"v_max_f32 v{M+h}, v{LA+h}, v{LB+h}")
def xreduce(op, mid):
    a(f"v_permlane32_swap_b32 v{M}, v{M+1}")
    a(f"v_permlane32_swap_b32 v{M+2}, v{M+3}")
    a(f"{op} v{M}, v{M}, v{M+1}")
    a(f"{op} v{M+2}, v{M+2}, v{M+3}")
    a(f"v_permlane16_swap_b32 v{M}, v{M+2}")
    a(f"{op} v{M}, v{M}, v{M+2}")
    mid(M)
    a(f"v_mov_b32 v{M+2}, v{M}")
    a(f"v_permlane16_swap_b32 v{M}, v{M+2}")
    a(f"v_mov_b32 v{M+1}, v{M}")
    a(f"v_mov_b32 v{M+3}, v{M+2}")
    a(f"v_permlane32_swap_b32 v{M}, v{M+1}")
    a(f"v_permlane32_swap_b32 v{M+2}, v{M+3}")
xreduce("v_max_f32", lambda r: a(f"v_mul_f32 v{r}, s{sSC}, v{r}"))
for h in range(4):
    a(f"v_fma_f32 v{LA+h}, v{LA+h}, s{sSC}, -v{M+h}")
    a(f"v_fma_f32 v{LB+h}, v{LB+h}, s{sSC}, -v{M+h}")
for h in range(4):
    a(f"v_exp_f32 v{LA+h}, v{LA+h}")
    a(f"v_exp_f32 v{LB+h}, v{LB+h}")
for h in range(4): a(f"v_add_f32 v{M+h}, v{LA+h}, v{LB+h}")
xreduce("v_add_f32", lambda r: a(f"v_rcp_f32 v{r}, v{r}"))
a("s_waitcnt lgkmcnt(0)")
lds_add(F_EXR)
def pv(i):
    a(f"{MF} {v(OM+4*i,4)}, {v(VM+2*(3-i),4)}, {v(PP+4*i,4)}, 0")
    a(f"{MF} {v(OX+4*i,4)}, {v(VXX+2*(3-i),4)}, {v(PP+4*i,4)}, 0")
for h in range(4):
    a(f"v_mul_f32 v{LA+h}, v{LA+h}, v{M+h}")
    a(f"v_mul_f32 v{LB+h}, v{LB+h}, v{M+h}")
    a(f"v_cvt_pk_bf16_f32 v{LA+h}, v{LA+h}, v{LA+h}")
    a(f"v_cvt_pk_bf16_f32 v{LB+h}, v{LB+h}, v{LB+h}")
    a(f"v_and_b32 v{PP+4*h}, v{LA+h}, v{MK}")
    a(f"v_and_b32 v{PP+4*h+1}, v{LB+h}, v{MK+1}")
    a(f"v_and_b32 v{PP+4*h+2}, v{LA+h}, v{MK+2}")
    a(f"v_and_b32 v{PP+4*h+3}, v{LB+h}, v{MK+3}")
    if h > 0: pv(h - 1)
pv(3)
for p in range(2):
    b = OPK + 4 * p
    pack(b, OM + 8 * p); pack(b + 2, OM + 8 * p + 4)
    a(f"v_permlane32_swap_b32 v{b}, v{b+2}")
    a(f"v_permlane32_swap_b32 v{b+1}, v{b+3}")
    a(f"global_store_dwordx4 v{vOMA}, {v(b,4)}, s[{sO2 if p else sWS}:{(sO2 if p else sWS)+1}] sc1")
    if OPT["oloc"]: a(f"global_store_dwordx4 v{vOMA}, {v(b,4)}, s[{56+2*p}:{57+2*p}]")
pack(XP, OX)
a("s_mov_b32 exec_lo, 0")
pack(XP, OX + 4)
a("s_mov_b32 exec_hi, 0xffff0000")
pack(XP, OX + 12)
a("s_mov_b64 exec, 0xffff0000")
pack(XP, OX + 8)
a("s_mov_b64 exec, -1")
a(f"global_store_dwordx2 v{vOXA}, {v(XP,2)}, s[{sWS}:{sWS+1}] offset:2048 sc1")
if OPT["oloc"]: a(f"global_store_dwordx2 v{vOXA}, {v(XP,2)}, s[56:57] offset:2048")
for p in range(2): a(cs2(M + p, OPK + 4 * p, OPK + 4 * p + 1, False))
for p in range(2): a(cs2(M + p, OPK + 4 * p + 2, OPK + 4 * p + 3))
a(cs2(cVAL, XP, XP + 1, False))
a(f"v_mov_b32 v{cADR}, v{vCEL}")
a(f"v_permlane16_swap_b32 v{M}, v{M+1}")
a(f"v_add3_u32 v{cVAL}, v{cVAL}, v{M}, v{M+1}")
row_allreduce(cVAL)
if OPT["odrain"]: a("s_waitcnt vmcnt(0)")
cell_add()

a.label("L_tail")
pp(3, 8)
trace_at(20)
a(f"s_setprio {OPT['prioG']}")
sMT, sKH, sRD, sGM = 41, 42, 55, 53
a(f"s_sub_u32 s{sMT}, s{sWV}, 4")
a(f"s_lshr_b32 s{sKH}, s{sMT}, 2")
a(f"s_and_b32 s{sMT}, s{sMT}, 3")
ACCB, OF, WB = 8, 28, 68
NB = 20
vWM, vWX, vO4, vO2 = 148, 152, 156, 157
vGAD, vGATE, vRD, vFM, vFK, vCS = 160, 161, 162, 163, 164, 165
sOP = 56
a(f"v_bfe_u32 v{vT1}, v{vLANE}, 2, 2")
a(f"v_and_b32 v{vT2}, 3, v{vLANE}")
a(f"v_lshlrev_b32 v{vT2}, 3, v{vT2}")
a(f"v_lshrrev_b32 v{vT3}, 1, v{vG}")
a(f"v_mul_u32_u24 v{vT3}, 12, v{vT3}")
a(f"v_lshl_add_u32 v{vT3}, v{vG}, 2, v{vT3}")
a(f"v_add_u32 v{vT3}, v{vT3}, v{vT1}")
a(f"v_mul_u32_u24 v{vT3}, 160, v{vT3}")
a(f"v_add_u32 v{vO4}, v{vT3}, v{vT2}")
a(f"v_mul_u32_u24 v{vT3}, 20, v{vG}")
a(f"v_add_u32 v{vT3}, v{vT3}, v{vT1}")
a(f"v_mul_u32_u24 v{vT3}, 160, v{vT3}")
a(f"v_add_u32 v{vO2}, v{vT3}, v{vT2}")
a(f"s_lshl_b32 s{sT0}, s{sRB}, 1")
a(f"s_add_u32 s{sT0}, s{sT0}, s{sROLE}")
a(f"s_lshl_b32 s{sT0}, s{sT0}, 2")
a(f"s_add_u32 s{sGM}, s{sT0}, s{sMT}")
a(f"s_mul_i32 s43, s{sGM}, 20480")
a(f"s_add_u32 s43, s43, {OWS}")
for q in range(4):
    a(f"s_add_u32 s{sT0}, s{sCG}, {q}" if OPT["orot"] else f"s_mov_b32 s{sT0}, {q}")
    a(f"s_and_b32 s{sT0}, s{sT0}, 3")
    a(f"s_lshl2_add_u32 s{sT0}, s{sKH}, s{sT0}")
    a(f"s_mul_i32 s{sT1}, s{sT0}, 12800")
    a(f"v_add_u32 v{vWM+q}, s{sT1}, v{vO4}")
    a(f"v_add_u32 v{vWX+q}, s{sT1}, v{vO2}")
    a(f"s_mul_i32 s{sT1}, s{sT0}, 2560")
    a(f"s_add_u32 s{sT1}, s{sT1}, s43")
    a(f"s_add_u32 s{sOP+2*q}, s{sWS}, s{sT1}")
    a(f"s_addc_u32 s{sOP+2*q+1}, s{sWS+1}, 0")
a(f"s_lshr_b32 s{sT0}, s{sCG}, 2")
a(f"s_cmp_eq_u32 s{sT0}, s{sKH}")
a(f"s_cselect_b32 s{sT0}, {OLOC if OPT['oloc'] else 0}, 0")
a(f"v_lshl_add_u32 v{vO4}, v{vLANE}, 4, s{sT0}")
a(f"v_lshl_add_u32 v{vO2}, v{vLANE}, 3, s{sT0}")
a(f"s_mul_i32 s{sRD}, s{sMT}, 5120")
a(f"s_add_u32 s{sRD}, s{sRD}, {RED}")
a(f"v_lshl_add_u32 v{vRD}, v{vLANE}, 4, s{sRD}")
a(f"s_lshl_b32 s{sT0}, s{sMT}, 2")
a(f"v_add_u32 v{vFM}, s{sT0}, v{vFL}")
a(f"s_lshl_b32 s{sT0}, s{sWV}, 3")
a(f"s_add_u32 s{sT0}, s{sT0}, {HGO - 32}")
a(f"v_mov_b32 v{vFK}, s{sT0}")
a("s_mov_b32 s44, 0")
vGOM, vSTG, vOUT = 158, 159, [166, vT2, vT3]
a(f"s_lshl_b32 s{sT0}, s{sMT}, 6")
a(f"s_add_u32 s{sT0}, s{sT0}, {GOM}")
a(f"v_lshl_add_u32 v{vGOM}, v{vN}, 2, s{sT0}")
a(f"v_mul_u32_u24 v{vSTG}, 160, v{vN}")
a(f"v_lshl_add_u32 v{vSTG}, v{vG}, 3, v{vSTG}")
a(f"v_add_u32 v{vSTG}, s{sRD}, v{vSTG}")
a(f"s_mul_i32 s{sT0}, s{sGM}, {16*1280}")
a(f"s_mul_i32 s{sT1}, s{sCG}, 160")
a(f"s_add_u32 s{sT0}, s{sT0}, s{sT1}")
for i in range(3): t10(vOUT[i], 64 * i, f"s{sT0}", vT1)
frs = []
for z in range(2):
    for c in range(2):
        for p in range(2): frs.append(("m", 2 * z + c, p))
    frs.append(("x", 2 * z, 0))
def fidx(kind, q, p): return frs.index((kind, q, p))
loads = []; landed = {}
for q in range(4):
    for p in range(2):
        i = fidx("m", q, p)
        loads.append(f"global_load_dwordx4 {v(OF+4*i,4)}, v{vO4}, s[{sOP+2*q}:{sOP+2*q+1}] offset:{1024*p} sc1"); landed[i] = len(loads)
    i = fidx("x", q & 2, 0)
    loads.append(f"global_load_dwordx2 {v(OF+4*i+2*(q&1),2)}, v{vO2}, s[{sOP+2*q}:{sOP+2*q+1}] offset:2048 sc1"); landed[i] = len(loads)
reads, gate, work, users = [], [], [], []
fc = 0
for i, (kind, q, p) in enumerate(frs):
    for T in range(5):
        b = WB + 4 * (fc % NB)
        g = users[fc - NB] if fc >= NB else -1
        for e in range(2):
            if kind == "m": row, base = 40 * p + 8 * e, vWM + q
            else: row, base = 16, vWX + q + e
            reads.append(f"ds_read_b64_tr_b16 {v(b+2*e,2)}, v{base} offset:{160*row + 32*T}"); gate.append(g)
        txt = f"{MF} {v(ACCB+4*T,4)}, {v(b,4)}, {v(OF+4*i,4)}, {v(ACCB+4*T,4) if i else 0}"
        if T == 0: txt = f"s_waitcnt vmcnt({len(loads) - landed[i]})\n" + txt
        if T in (1, 2) and not OPT.get("nochk"): txt += "\n" + cs2(vCS, OF+4*i+2*T-2, OF+4*i+2*T-1)
        users.append(len(work)); work.append((len(reads) - 1, txt)); fc += 1
lds_wait(F_WOL, 3, sleep=0)
trace()
a.label("L_oretry")
PRE = 2 * NB
for i in range(PRE):
    a(reads[i])
    if i >= 12 and i % 4 == 0: a("s_waitcnt lgkmcnt(8)")
a(f"s_lshl_b32 s45, s{sROLE}, 3")
a("s_sub_u32 s45, 8, s45")
lds_wait(F_EXR, "s45", sleep=0)
cell_verify()
if OPT["lowspin"] & 4: a("s_setprio 0")
cell_wait(vFK, 45, 1 if OPT["lowspin"] & 8 else 0)
if OPT["lowspin"] & 4: a(f"s_setprio {OPT['prioG']}")
pp(7, 8)
if OPT.get("pp") == 7: a("s_waitcnt vmcnt(0)")
if OPT["khprio"]:
    a(f"s_cmp_eq_u32 s{sKH}, 0")
    a("s_cbranch_scc1 L_kp")
    a("s_setprio 3")
    a.label("L_kp")
trace()
for x in loads: a(x)
if OPT.get("otr"):
    trace(); a(f"s_waitcnt vmcnt({len(loads)-1}) lgkmcnt(0)"); trace(); a("s_waitcnt vmcnt(0) lgkmcnt(0)"); trace(); a("s_waitcnt lgkmcnt(0)")
a(f"v_mov_b32 v{vCS}, 0")
lds_pipe(reads, work, gate, maxfly=14, pre=PRE, eager=True)
if OPT.get("nochk"): a("s_branch L_ook")
wave_sum_zero(vCS, "s45")
a("s_cbranch_scc1 L_ook")
a(f"v_lshlrev_b32 v{vO4}, 4, v{vLANE}")
a(f"v_lshlrev_b32 v{vO2}, 3, v{vLANE}")
a("s_sleep 4")
a("s_add_u32 s44, s44, 1")
a(f"s_cmp_lt_u32 s44, {SPIN_MAX}")
a("s_cbranch_scc1 L_oretry")
a.label("L_ook")
pp(8, 8)
pp(13, OPT.get("pw", 8), 44)
trace()
QQ = 28
a(f"v_mov_b32 v{vT0}, 1")
a("s_mov_b64 exec, 1")
a(f"ds_add_rtn_u32 v{vT0}, v{vFM}, v{vT0} offset:{F_RED}")
a("s_mov_b64 exec, -1")
a.label("L_fb")
a(f"ds_read2_b32 v[48:49], v{vFM} offset0:{F_ARD//4} offset1:{F_QRD//4}")
a(f"ds_read_b32 v50, v{vFL} offset:{F_GRD}")
a(f"ds_read2st64_b32 {v(vGAD,2)}, v{vGOM} offset0:0 offset1:1")
for T in range(5): a(f"ds_read_b128 {v(QQ+4*T,4)}, v{vRD} offset:{1024*T}")
a("s_waitcnt lgkmcnt(6)")
a(f"v_readfirstlane_b32 s{sT2}, v{vT0}")
a(f"v_readfirstlane_b32 s{sT0}, v48")
a(f"v_readfirstlane_b32 s{sT1}, v49")
a(f"v_readfirstlane_b32 s{sT3}, v50")
a(f"s_cmp_eq_u32 s{sT2}, 0")
a(f"s_cselect_b32 s{sT0}, 1, s{sT0}")
a(f"s_bitcmp1_b32 s{sT2}, 0")
a(f"s_cselect_b32 s{sT0}, s{sT1}, s{sT0}")
a(f"s_and_b32 s{sT0}, s{sT0}, s{sT3}")
a("s_add_u32 s44, s44, 1")
a(f"s_cmp_ge_u32 s44, {SPIN_MAX}")
a(f"s_cselect_b32 s{sT0}, 1, s{sT0}")
a(f"s_cmp_lg_u32 s{sT0}, 0")
a("s_cbranch_scc1 L_fgo")
a("s_waitcnt lgkmcnt(0)")
if OPT["lowspin"] & 4: a("s_setprio 0")
a(f"s_sleep {2 if OPT['lowspin'] & 8 else 1}")
a("s_branch L_fb")
a.label("L_fgo")
trace()
a(f"s_bitcmp1_b32 s{sT2}, 0")
a("s_cbranch_scc1 L_fin")
a(f"s_cmp_lg_u32 s{sT2}, 0")
a("s_cbranch_scc1 L_fold")
a("s_waitcnt lgkmcnt(0)")
for T in range(5):
    for r in range(4): a(f"v_mul_f32 v{ACCB+4*T+r}, v{vGAD}, v{ACCB+4*T+r}")
    a(f"ds_write_b128 v{vRD}, {v(ACCB+4*T,4)} offset:{1024*T}")
lds_add(F_PRD, vaddr=vFM)
trace()
finish()
a.label("L_fold")
for T in range(5):
    a("s_waitcnt lgkmcnt(4)")
    for r in range(4): a(f"v_fmac_f32 v{QQ+4*T+r}, v{vGAD}, v{ACCB+4*T+r}")
    a(f"ds_write_b128 v{vRD}, {v(QQ+4*T,4)} offset:{1024*T}")
lds_add(F_QRD, vaddr=vFM)
trace()
finish()
a.label("L_fin")
a("s_waitcnt lgkmcnt(0)")
for T in range(5):
    for r in range(4): a(f"v_fmac_f32 v{QQ+4*T+r}, v{vGAD}, v{ACCB+4*T+r}")
    pack(48 + 2 * T, QQ + 4 * T)
    a(f"ds_write_b64 v{vSTG}, {v(48+2*T,2)} offset:{32*T}")
for i in range(3): a(f"ds_read_b128 {v(72+4*i,4)}, v{vRD} offset:{1024*i}")
for i in range(3):
    a(f"s_waitcnt lgkmcnt({2-i})")
    if i == 2: a("s_mov_b64 exec, 0xffffffff")
    a(f"global_store_dwordx4 v{vOUT[i]}, {v(72+4*i,4)}, s[{sOUT}:{sOUT+1}]" + ["", " sc1", " nt", " sc0 sc1"][OPT.get("osc", 0)])
trace()
finish()

a.label("L_aux")
a(f"s_setprio {OPT['prioX']}")
sAX = 41
a(f"s_and_b32 s{sAX}, s{sWV}, 1")
read_tag()
a(f"s_lshl_b32 s{sT0}, s{sRB}, 1")
a(f"s_add_u32 s{sT0}, s{sT0}, s{sROLE}")
a(f"s_lshl_b32 s{sT1}, s{sAX}, 3")
a(f"s_add_u32 s{sT1}, s{sT1}, {HGO + 64}")
a(f"v_mov_b32 v14, s{sT1}")
a(f"s_lshl_b32 s{sT0}, s{sT0}, 7")
a(f"s_mul_i32 s{sT2}, s{sCG}, {80*RP}")
a(f"s_add_u32 s{sT0}, s{sT0}, s{sT2}")
a(f"s_mul_i32 s{sT2}, s{sAX}, {YW2 - YWS}")
a(f"s_add_u32 s{sT0}, s{sT0}, s{sT2}")
a(f"s_add_u32 s{sT0}, s{sT0}, {YWS}")
a(f"v_lshrrev_b32 v13, 3, v{vLANE}")
a(f"v_and_b32 v12, 7, v{vLANE}")
a("v_xor_b32 v15, v13, v12")
a("v_lshlrev_b32 v15, 4, v15")
a("v_lshl_add_u32 v15, v13, 7, v15")
a(f"s_mul_i32 s{sT2}, s{sAX}, 10240")
a(f"s_add_u32 s{sT2}, s{sT2}, {YT}")
a(f"v_add_u32 v15, s{sT2}, v15")
a(f"v_mul_u32_u24 v13, {RP}, v13")
a("v_lshl_add_u32 v13, v12, 4, v13")
a(f"v_add_u32 v13, s{sT0}, v13")
a("v_mov_b32 v16, 0"); a("v_mov_b32 v17, 0"); a("v_mov_b32 v19, 0")
a("s_mov_b32 s44, 0")
AXQ, SEL, AXF, AYF, AA = 24, 44, 52, 120, 92
a(f"s_lshl_b32 s{sT0}, s{sAX}, 2")
a(f"v_add_u32 v{vT1}, s{sT0}, v{vG}")
a(f"v_and_b32 v{vT2}, 7, v{vN}")
a(f"v_xor_b32 v{vT1}, v{vT1}, v{vT2}")
a(f"v_lshlrev_b32 v{vT1}, 4, v{vT1}")
a(f"v_lshl_add_u32 v{vT1}, v{vN}, 7, v{vT1}")
a(f"v_add_u32 v8, {YT}, v{vT1}")
a(f"s_mul_i32 s{sT0}, s{sAX}, 5120")
a(f"s_add_u32 s{sT0}, s{sT0}, {XQT}")
a(f"v_mul_u32_u24 v10, 160, v{vN}")
a(f"v_lshl_add_u32 v10, v{vG}, 3, v10")
a(f"v_add_u32 v10, s{sT0}, v10")
a(f"s_mul_i32 s{sT0}, s{sAX}, 10240")
a(f"s_add_u32 s{sT0}, s{sT0}, {RED}")
a(f"v_lshl_add_u32 v11, v{vLANE}, 4, s{sT0}")
a(f"s_lshl_b32 s{sT0}, s{sAX}, 3")
a(f"v_add_u32 v12, s{sT0}, v{vFL}")
a(f"v_and_b32 v{vT1}, 1, v{vN}")
a(f"v_lshlrev_b32 v{vT1}, 4, v{vT1}")
a(f"v_mov_b32 v{vT3}, 0x3f80")
a(f"v_lshlrev_b32 v{vT1}, v{vT1}, v{vT3}")
a(f"v_lshlrev_b32 v{vT2}, 2, v{vG}")
a(f"v_lshrrev_b32 v{vT3}, 1, v{vN}")
a(f"v_sub_u32 v{vT2}, v{vT3}, v{vT2}")
for t in range(2):
    for j in range(4):
        a(f"v_cmp_eq_u32 vcc, {j - 8*t}, v{vT2}")
        a(f"v_cndmask_b32 v{SEL+4*t+j}, 0, v{vT1}, vcc")
a(f"s_lshl_b32 s45, s{sROLE}, 3")
a("s_sub_u32 s45, 8, s45")
lds_wait(F_WOL, 3, sleep=0)
for t in range(2):
    for T in range(5): a(f"ds_read_b64 {v(AXQ+10*t+2*T,2)}, v10 offset:{2560*t+32*T}")
lds_wait(F_EXR, "s45", sleep=0)
for i in range(20):
    a(f"v_lshlrev_b32 v{AXF+2*i}, 16, v{AXQ+i}")
    a(f"v_and_b32 v{AXF+2*i+1}, 0xffff0000, v{AXQ+i}")
a(f"s_lshl_b32 s{sT0}, s{sAX}, 7")
a(f"s_add_u32 s{sT0}, s{sT0}, {GOM + 256}")
a(f"v_lshl_add_u32 v9, v{vN}, 2, s{sT0}")
if OPT["lowspin"] & 1: a("s_setprio 0")
cell_wait(14, 43, 2 if OPT["lowspin"] & 8 else 0)
a(f"s_setprio {OPT['prioX']}")
trace_at(16)
pp(9, 2 * OPT.get("prole", 0))
if OPT.get("pp") == 9: a("s_waitcnt vmcnt(0)")
a.label("L_yretry")
a("v_mov_b32 v17, v13")
for i in range(10):
    a(f"global_load_dwordx4 {v(120+4*i,4)}, v17, s[{sWS}:{sWS+1}] sc1")
    if i < 9: a(f"v_add_u32 v17, {8*RP}, v17")
a("s_cmp_lg_u32 s44, 0")
a("s_cbranch_scc1 L_ax_set")
lds_wait(F_GRD, 1, sleep=0)
a("ds_read2_b32 v[18:19], v9 offset0:0 offset1:16")
a("s_waitcnt lgkmcnt(0)")
for i in range(40): a(f"v_mul_f32 v{AXF+i}, v{18 + i // 20}, v{AXF+i}")
a.label("L_ax_set")
a("v_mov_b32 v16, 0")
for i in range(10):
    a(f"s_waitcnt vmcnt({9-i})")
    a(f"ds_write_b128 v15, {v(120+4*i,4)} offset:{1024*i}")
    if not OPT.get("nochk"):
        a(cs2(16, 120+4*i, 121+4*i)); a(cs2(16, 122+4*i, 123+4*i))
if OPT.get("nochk"): a("s_branch L_yok")
wave_sum_zero(16, "s43")
a("s_cbranch_scc1 L_yok")
a("s_sleep 4")
a("s_add_u32 s44, s44, 1")
a(f"s_cmp_lt_u32 s44, {SPIN_MAX}")
a("s_cbranch_scc1 L_yretry")
a.label("L_yok")
pp(14, 2 * OPT.get("prole", 0), 44)
lds_add(F_YLD)
lds_wait(F_YLD, 2, sleep=0)
trace_at(17)
a("v_mov_b32 v16, 4")
a(f"v_lshl_add_u32 v17, v{vLANE}, 2, v12")
a("s_mov_b64 exec, 3")
a(f"ds_add_rtn_u32 v16, v17, v16 offset:{F_RED}")
a("s_mov_b64 exec, -1")
for T in range(5):
    for p in range(2): a(f"ds_read_b128 {v(AYF+8*T+4*p,4)}, v8 offset:{10240*p+2048*T}")
RR = [AA, 24]
for T in range(5):
    for p in range(2):
        a(f"s_waitcnt lgkmcnt({9-2*T-p})")
        for t in range(2):
            a(f"{MF} {v(RR[t]+4*T,4)}, {v(AYF+8*T+4*p,4)}, {v(SEL+4*t,4)}, {v(RR[t]+4*T,4) if p else 0}")
a(f"ds_read2_b32 v[18:19], v12 offset0:{F_PRD//4} offset1:{F_PRD//4 + 1}")
for t in range(2):
    for T in range(5): a(f"ds_read_b128 {v(AYF+20*t+4*T,4)}, v11 offset:{5120*t+1024*T}")
a("s_waitcnt lgkmcnt(0)")
for t in range(2):
    lf = a.newlabel("Lxf"); ld = a.newlabel("Lxd"); lg = a.newlabel("Lxg")
    a(f"v_readlane_b32 s42, v16, {t}")
    a(f"v_readfirstlane_b32 s45, v{18+t}")
    a("s_cmp_lg_u32 s42, 0")
    a(f"s_cbranch_scc1 {lf}")
    for T in range(5):
        for r in range(4): a(f"v_mul_f32 v{RR[t]+4*T+r}, v{RR[t]+4*T+r}, v{AXF+20*t+4*T+r}")
        a(f"ds_write_b128 v11, {v(RR[t]+4*T,4)} offset:{5120*t+1024*T}")
    lds_add(F_ARD + 4 * t, vaddr=12)
    a(f"s_branch {ld}")
    a.label(lf)
    a("s_cmp_lg_u32 s45, 0")
    a(f"s_cbranch_scc1 {lg}")
    lds_wait(F_PRD + 4 * t, 1, vaddr=12, sleep=0)
    for T in range(5): a(f"ds_read_b128 {v(AYF+20*t+4*T,4)}, v11 offset:{5120*t+1024*T}")
    a("s_waitcnt lgkmcnt(0)")
    a.label(lg)
    for T in range(5):
        for r in range(4): a(f"v_fmac_f32 v{AYF+20*t+4*T+r}, v{RR[t]+4*T+r}, v{AXF+20*t+4*T+r}")
        a(f"ds_write_b128 v11, {v(AYF+20*t+4*T,4)} offset:{5120*t+1024*T}")
    lds_add(F_QRD + 4 * t, vaddr=12)
    a.label(ld)
trace()
finish()

a.label("L_awave")
if OPT.get("gsolo"): finish()
a("s_setprio 2")
SRD_H = 48
sA, sCT, sRH, sLC, sPL, sC0, sHB, sUB, sRHO, sNST, sDV, sYB = 52, 53, 54, 55, 56, 57, 58, 59, 60, 61, 62, 63
a(f"s_sub_u32 s{sA}, s{sWV}, 2")
a(f"s_cmp_ge_u32 s{sA}, 5")
a(f"s_cselect_b32 s{sRH}, 1, 0")
a(f"s_mul_i32 s{sT0}, s{sRH}, 5")
a(f"s_sub_u32 s{sCT}, s{sA}, s{sT0}")
LCH = {4: 0, 2: 0, 5: 1, 3: 1, 8: 2, 6: 2, 9: 3, 7: 3, 10: 4, 11: 4}
PLN = {4: 0, 2: 1, 5: 0, 3: 1, 8: 0, 6: 1, 9: 0, 7: 1, 10: 0, 11: 1}
RH0 = {4: 0, 2: 5, 5: 0, 3: 5, 8: 0, 6: 5, 9: 0, 7: 5, 10: 0, 11: 4}
NST = {4: 5, 2: 3, 5: 5, 3: 3, 8: 5, 6: 3, 9: 5, 7: 3, 10: 4, 11: 4}
def table(d, sdst):
    val = sum(d[w] << (3 * (w - 2)) for w in range(2, 12))
    a(f"s_lshr_b32 s{sdst}, {hex(val)}, s{sT1}")
    a(f"s_and_b32 s{sdst}, s{sdst}, 7")
a(f"s_mul_i32 s{sT1}, s{sA}, 3")
table(LCH, sLC); table(PLN, sPL); table(RH0, sRHO); table(NST, sNST)
a(f"s_lshl_b32 s{sRHO}, s{sRHO}, 6")
a(f"s_lshl_b32 s{sT0}, s{sCG}, 4")
a(f"s_add_u32 s{sT0}, s{sT0}, s{sRB}")
a(f"s_mul_i32 s{sT0}, s{sT0}, 5")
a(f"s_add_u32 s{sC0}, s{sT0}, s{sLC}")
a(f"s_lshl_b32 s{sT0}, s{sC0}, 12")
a(f"s_add_u32 s{SRD_H}, s{sSSM}, s{sT0}")
a(f"s_addc_u32 s{SRD_H+1}, s{sSSM+1}, 0")
a(f"s_and_b32 s{SRD_H+1}, s{SRD_H+1}, 0xffff")
a(f"s_mov_b32 s{SRD_H+2}, 4096")
a(f"s_mov_b32 s{SRD_H+3}, 0x00020000")
a(f"s_add_u32 s66, s{sSSM}, s{sT0}")
a(f"s_addc_u32 s67, s{sSSM+1}, 0")
a("s_load_dword s65, s[66:67], 0x7fc")
a(f"s_mul_i32 s{sYB}, s{sPL}, {YW2 - YWS}")
a(f"s_mul_i32 s{sT0}, s{sC0}, {RP}")
a(f"s_add_u32 s{sYB}, s{sYB}, s{sT0}")
a(f"s_add_u32 s{sYB}, s{sYB}, {YWS}")
vHO = 160
a(f"s_lshl_b32 s{sT1}, s{sPL}, 11")
a(f"v_lshl_add_u32 v{vHO}, v{vLANE}, 4, s{sT1}")
a(f"s_mul_i32 s{sHB}, s{sLC}, {HCH}")
a(f"s_add_u32 s{sHB}, s{sHB}, {HC}")
a(f"s_mul_i32 s{sUB}, s{sLC}, {ULCH}")
a(f"s_add_u32 s{sUB}, s{sUB}, {UL}")
HN, HM, HE, HOD = 80, 88, 92, 100
def h_loads():
    for c in range(2):
        a(f"buffer_load_dwordx4 {v(HN+4*c,4)}, v{vHO}, s[{SRD_H}:{SRD_H+3}], 0 offen offset:{1024*c}")
def h_build():
    a(f"s_mov_b32 s{sT2}, 0xffff")
    a(f"v_readlane_b32 s{sT1}, v{HN+3}, 63")
    for c in range(2): a(f"v_mov_b32_dpp v{HM+c}, v{HN+4*c+3} wave_shr:1 row_mask:0xf bank_mask:0xf")
    a(f"v_writelane_b32 v{HM}, s65, 0")
    a(f"v_writelane_b32 v{HM+1}, s{sT1}, 0")
    for c in range(2):
        for d in range(4):
            src = HN + 4 * c + 3 - d
            a(f"v_alignbit_b32 v{HE+4*c+d}, v{src}, v{src}, 16")
            lower = (HN + 4 * c + 2 - d) if d < 3 else (HM + c)
            a(f"v_bfi_b32 v{HOD+4*c+d}, s{sT2}, v{src}, v{lower}")
if OPT["hmode"] == 2: h_loads()
sCH = 64
a(f"s_mul_i32 s{sCH}, s{sCG}, 80")
a(f"s_lshl_b32 s{sT0}, s{sCT}, 4")
a(f"s_add_u32 s{sCH}, s{sCH}, s{sT0}")
a(f"s_lshl_b32 s{sT0}, s{sCH}, 3")
a(f"v_lshl_add_u32 v{vT0}, v{vN}, 3, s{sT0}")
a(f"global_load_dwordx2 v[14:15], v{vT0}, s[{sSH}:{sSH+1}]")
a(f"s_lshl_b32 s{sT0}, s{sC0}, 1")
a(f"v_mov_b32 v{vT0}, s{sT0}")
a(f"global_load_ushort v161, v{vT0}, s[{sDD}:{sDD+1}]")
a(f"v_bfe_u32 v{vT1}, v{vLANE}, 2, 2")
a(f"v_lshl_add_u32 v{vT1}, v{vG}, 4, v{vT1}")
a(f"v_mul_u32_u24 v{vT1}, 160, v{vT1}")
a(f"v_and_b32 v{vT2}, 3, v{vLANE}")
a(f"v_lshl_add_u32 v{vT1}, v{vT2}, 3, v{vT1}")
a(f"s_lshl_b32 s{sT0}, s{sCT}, 5")
a(f"s_mul_i32 s{sT1}, s{sRH}, {64*160}")
a(f"s_add_u32 s{sT0}, s{sT0}, s{sT1}")
a(f"s_add_u32 s{sT0}, s{sT0}, {KT}")
a(f"v_add_u32 v13, s{sT0}, v{vT1}")
a(f"s_lshl_b32 s{sT0}, s{sA}, 11")
a(f"s_add_u32 s{sT0}, s{sT0}, {US}")
a(f"v_and_b32 v8, 7, v{vN}")
a(f"v_lshlrev_b32 v9, 1, v{vG}")
a(f"v_xor_b32 v8, v8, v9")
a(f"v_lshlrev_b32 v8, 4, v8")
a(f"v_lshl_add_u32 v8, v{vN}, 7, v8")
a(f"v_add_u32 v8, s{sT0}, v8")
a(f"v_xor_b32 v9, 16, v8")
a(f"v_lshrrev_b32 v10, 3, v{vLANE}")
a(f"v_and_b32 v11, 7, v{vLANE}")
a(f"v_xor_b32 v12, v10, v11")
a(f"v_lshlrev_b32 v12, 4, v12")
a(f"v_lshl_add_u32 v12, v10, 7, v12")
a(f"v_add_u32 v12, s{sT0}, v12")
a(f"v_mul_u32_u24 v10, {RP}, v10")
a(f"v_lshl_add_u32 v10, v11, 4, v10")
a(f"s_mul_i32 s{sT0}, s{sCH}, {RP}")
a(f"s_lshl_b32 s{sT1}, s{sRB}, 8")
a(f"s_add_u32 s{sT0}, s{sT0}, s{sT1}")
a(f"s_lshl_b32 s{sT1}, s{sRH}, 7")
a(f"s_add_u32 s{sT0}, s{sT0}, s{sT1}")
a(f"s_add_u32 s{sT0}, s{sT0}, {UWS}")
a(f"v_add_u32 v10, s{sT0}, v10")
a(f"v_add_u32 v11, {8*RP}, v10")
a(f"v_and_b32 v{vT1}, 1, v{vLANE}")
a(f"v_lshrrev_b32 v{vT2}, 3, v{vLANE}")
a(f"v_lshl_add_u32 v{vT1}, v{vT1}, 3, v{vT2}")
a(f"s_lshl_b32 s{sT0}, s{sCH}, 8")
a(f"s_lshl_b32 s{sT1}, s{sRB}, 8")
a(f"s_add_u32 s{sT0}, s{sT0}, s{sT1}")
a(f"s_lshl_b32 s{sT1}, s{sRH}, 7")
a(f"s_add_u32 s{sT0}, s{sT0}, s{sT1}")
a(f"s_add_u32 s{sT0}, s{sT0}, {EU}")
a(f"v_lshl_add_u32 v162, v{vT1}, 3, s{sT0}")
a(f"s_lshr_b32 s{sT0}, s{sC0}, 4")
a(f"s_lshl_b32 s{sT0}, s{sT0}, 12")
a(f"s_and_b32 s{sT1}, s{sC0}, 15")
a(f"s_lshl_b32 s{sT1}, s{sT1}, 3")
a(f"s_add_u32 s{sT0}, s{sT0}, s{sT1}")
a(f"s_lshl_b32 s{sT1}, s{sPL}, 11")
a(f"s_add_u32 s{sT0}, s{sT0}, s{sT1}")
a(f"s_add_u32 s{sT0}, s{sT0}, {EU}")
a(f"v_lshl_add_u32 v163, v{vLANE}, 7, s{sT0}")
AB, vBB = 154, 158
CACC, CA, CB0, CB1, AD = 16, 48, 80, 112, 144
def cb(st, z): return (CB1 if st else CB0) + 4 * z
def rdA(m):
    j, b = (7 - m) // 2, (7 - m) % 2
    return [f"ds_read2_b32 {v(CA+4*m+2*e,2)}, v{AB+j} offset0:{128*b+2*e} offset1:{128*b+2*e+1}" for e in range(2)]
def rdB(st, z): return f"ds_read_b128 {v(cb(st,z),4)}, v{vBB} offset:{512*z}"
def conv_adv():
    for j in range(4): a(f"v_subrev_u32 v{AB+j}, 64, v{AB+j}")
    a(f"v_subrev_u32 v{vBB}, 64, v{vBB}")
def PRE_A():
    n = 0
    for m in range(8):
        for x in rdA(m):
            a(x); n += 1
            if n == 12: a("s_waitcnt lgkmcnt(6)")
a(f"v_mov_b32 v{vT2}, 0")
a(f"v_mov_b32 v{vT3}, 0")
a(f"v_lshl_add_u32 v{vT1}, v{vN}, 2, s{sHB}")
a(f"ds_write_b32 v{vT1}, v{vT2} offset:4096")
a(f"ds_write_b32 v{vT1}, v{vT2} offset:{4096+HOO}")
a(f"v_lshl_add_u32 v{vT1}, v{vLANE}, 3, s{sUB}")
a(f"ds_write_b64 v{vT1}, {v(vT2,2)}")
a(f"s_add_u32 s{sT0}, s{sHB}, {4080 - 1024}")
a(f"v_sub_u32 v159, s{sT0}, v{vHO}")
read_tag()
a("s_waitcnt vmcnt(0)")
W0 = 40
a(f"s_mov_b32 s{sT2}, 0xffff")
a(f"v_and_b32 v{W0}, 0xffff, v14")
a(f"v_bfi_b32 v{W0+1}, s{sT2}, v15, v14")
a(f"v_and_b32 v{W0+2}, 0xffff0000, v15")
a(f"v_alignbit_b32 v{W0+3}, v14, v14, 16")
a(f"v_alignbit_b32 v{W0+4}, v15, v15, 16")
a(f"v_readfirstlane_b32 s{sDV}, v161")
a(f"s_cmp_eq_u32 s{sPL}, 0")
a(f"s_cselect_b32 s{sDV}, s{sDV}, 0")
a("s_cselect_b32 s65, 0, s65")
a(f"v_sub_u32 v{vT1}, 2031, v{vN}")
a(f"v_and_b32 v{vT2}, 1, v{vT1}")
a(f"v_lshrrev_b32 v{vT1}, 1, v{vT1}")
a(f"v_lshl_add_u32 v{vT1}, v{vG}, 2, v{vT1}")
a(f"v_lshlrev_b32 v{vT1}, 2, v{vT1}")
a(f"v_mul_u32_u24 v{vT2}, {HOO}, v{vT2}")
a(f"s_sub_u32 s{sT0}, s{sHB}, s{sRHO}")
a(f"v_add3_u32 v{vT1}, v{vT1}, v{vT2}, s{sT0}")
for j in range(4): a(f"v_subrev_u32 v{AB+j}, {512*7 - 1024*j}, v{vT1}")
a(f"v_lshlrev_b32 v{vT1}, 5, v{vN}")
a(f"v_lshl_add_u32 v{vT1}, v{vG}, 4, v{vT1}")
a(f"s_sub_u32 s{sT0}, s{sUB}, s{sRHO}")
a(f"s_add_u32 s{sT0}, s{sT0}, 480")
a(f"v_add_u32 v{vBB}, s{sT0}, v{vT1}")
a(f"v_and_b32 v{vT1}, 1, v{vN}")
a(f"v_lshlrev_b32 v{vT1}, 4, v{vT1}")
a(f"v_lshlrev_b32 v{vT1}, v{vT1}, s{sDV}")
a(f"v_lshlrev_b32 v{vT2}, 2, v{vG}")
a(f"v_lshrrev_b32 v{vT3}, 1, v{vN}")
a(f"v_sub_u32 v{vT2}, v{vT3}, v{vT2}")
for j in range(4):
    a(f"v_cmp_eq_u32 vcc, {j-8}, v{vT2}")
    a(f"v_cndmask_b32 v{AD+j}, 0, v{vT1}, vcc")
a(f"v_and_b32 v{vT1}, 1, v{vG}")
a(f"v_lshlrev_b32 v{vT1}, 9, v{vT1}")
a(f"v_lshl_add_u32 v{vT1}, v{vN}, 5, v{vT1}")
a(f"v_lshrrev_b32 v{vT2}, 1, v{vG}")
a(f"v_lshl_add_u32 v{vT1}, v{vT2}, 4, v{vT1}")
a(f"v_add_u32 v148, s{sYB}, v{vT1}")
a(f"s_mul_i32 s{sT0}, s{sC0}, {RP}")
a(f"s_add_u32 s{sT0}, s{sT0}, {UWS}")
a(f"v_add_u32 v149, s{sT0}, v{vHO}")
a(f"v_add_u32 v150, s{sUB}, v{vHO}")
a(f"s_lshl_b32 s{sT0}, s{sLC}, 2")
a(f"v_add_u32 v151, s{sT0}, v{vFL}")
a(f"v_and_b32 v{vT1}, 1, v{vN}")
a(f"v_lshl_add_u32 v{vT1}, v{vT1}, 2, v{vG}")
a(f"v_lshrrev_b32 v{vT2}, 2, v{vN}")
a(f"v_lshl_add_u32 v{vT1}, v{vT1}, 2, v{vT2}")
a(f"s_lshl_b32 s{sT0}, s{sPL}, 7")
a(f"s_add_u32 s{sT0}, s{sT0}, {ZR}")
a(f"v_lshl_add_u32 v152, v{vT1}, 2, s{sT0}")
a(f"v_and_b32 v{vT1}, 1, v{vLANE}")
a(f"v_lshlrev_b32 v{vT1}, 15, v{vT1}")
a(f"v_bfe_u32 v{vT2}, v{vLANE}, 1, 4")
a(f"v_lshl_add_u32 v{vT1}, v{vT2}, 11, v{vT1}")
a(f"v_lshrrev_b32 v{vT2}, 5, v{vLANE}")
a(f"v_lshl_add_u32 v{vT1}, v{vT2}, 3, v{vT1}")
a(f"s_lshl_b32 s{sT0}, s{sCG}, 8")
a(f"s_add_u32 s{sT0}, s{sT0}, {FB + 64}")
a(f"v_add_u32 v153, s{sT0}, v{vT1}")
trace()
if OPT["hmode"] == 0:
    lds_wait(F_USC, 1)
    h_loads()
lds_wait(F_KVT, 1, sleep=0)
trace()
KR, VR, KS, UP = 20, 30, 46, 64
for z in range(5): a(f"ds_read_b64_tr_b16 {v(KR+2*z,2)}, v13 offset:{640*z}")
for z in range(4): a(f"ds_read_b64_tr_b16 {v(VR+2*z,2)}, v13 offset:{VT-KT+640*z}")
a("s_waitcnt lgkmcnt(4)")
for o2 in range(8):
    a(f"v_dot2_f32_bf16 v{KS+2*o2}, v{KR+o2}, v{W0+2}, 0")
    a(f"v_dot2_f32_bf16 v{KS+2*o2+1}, v{KR+o2+1}, v{W0+4}, 0")
for o2 in range(8):
    a(f"v_dot2_f32_bf16 v{KS+2*o2}, v{KR+o2+1}, v{W0+1}, v{KS+2*o2}")
    a(f"v_dot2_f32_bf16 v{KS+2*o2+1}, v{KR+o2+2}, v{W0+3}, v{KS+2*o2+1}")
for o2 in range(8):
    a(f"v_dot2_f32_bf16 v{KS+2*o2}, v{KR+o2+2}, v{W0}, v{KS+2*o2}")
a("s_waitcnt lgkmcnt(0)")
for o2 in range(8):
    a(f"v_lshlrev_b32 v62, 16, v{VR+o2}")
    a(f"v_and_b32 v63, 0xffff0000, v{VR+o2}")
    a(f"v_mul_f32 v62, v{KS+2*o2}, v62")
    a(f"v_mul_f32 v63, v{KS+2*o2+1}, v63")
    a(f"v_cvt_pk_bf16_f32 v{UP+o2}, v62, v63")
    if o2 == 3: a(f"ds_write_b128 v8, {v(UP,4)}")
a(f"ds_write_b128 v9, {v(UP+4,4)}")
a(f"ds_read_b128 {v(20,4)}, v12")
a(f"ds_read_b128 {v(24,4)}, v12 offset:1024")
a("s_waitcnt lgkmcnt(1)")
a(f"global_store_dwordx4 v10, {v(20,4)}, s[{sWS}:{sWS+1}] sc1")
a("s_waitcnt lgkmcnt(0)")
a(f"global_store_dwordx4 v11, {v(24,4)}, s[{sWS}:{sWS+1}] sc1")
for c in range(2): a(cs2(29+2*c, 20+4*c, 21+4*c, False))
for c in range(2): a(cs2(29+2*c, 22+4*c, 23+4*c))
for md in ("quad_perm:[1,0,3,2]", "quad_perm:[2,3,0,1]", "row_half_mirror"):
    for r in (29, 31): a(f"v_add_u32_dpp v{r}, v{r}, v{r} {md} row_mask:0xf bank_mask:0xf")
a(f"v_mov_b32 v28, s{sTAG}")
a("s_mov_b32 exec_lo, 0x02020202"); a("s_mov_b32 exec_hi, 0x02020202")
a("v_mov_b32 v29, v31")
a("s_mov_b32 exec_lo, 0x03030303"); a("s_mov_b32 exec_hi, 0x03030303")
if OPT.get("udrain"): a("s_waitcnt vmcnt(0)")
a(f"global_store_dwordx2 v162, v[28:29], s[{sWS}:{sWS+1}] sc1")
a("s_mov_b64 exec, -1")
trace()
pp(10, 10)
if OPT.get("pp") == 10: a("s_waitcnt vmcnt(0)")
if OPT["hmode"] == 1:
    lds_add(F_UST)
    lds_wait(F_UST, 10, sleep=0)
    h_loads()
    a("s_waitcnt vmcnt(0)")
else: a("s_waitcnt vmcnt(3)")
h_build()
for c in range(2):
    a(f"ds_write_b128 v159, {v(HE+4*c,4)} offset:{1024*(1-c)}")
    a(f"ds_write_b128 v159, {v(HOD+4*c,4)} offset:{1024*(1-c)+HOO}")
lds_add(F_HRD, vaddr=151)
a("v_mov_b32 v28, 0"); a("v_mov_b32 v29, 0"); a("v_mov_b32 v31, 0")
a("s_mov_b32 s44, 0")
lds_wait(F_HRD, 2, vaddr=151, sleep=0)
PRE_A()
trace()
pp(11, 10)
if OPT["pipe"]: entry_poll2(163, 30, 32, "0xffff", 28)
else: entry_poll(163, 30, "0xffff", 28)
trace()
pp(12, 10)
a.label("L_uretry")
a(f"global_load_dwordx4 {v(20,4)}, v149, s[{sWS}:{sWS+1}] sc1")
a(f"global_load_dwordx4 {v(24,4)}, v149, s[{sWS}:{sWS+1}] offset:1024 sc1")
a("s_add_u32 s44, s44, 1")
a("v_sub_u32 v36, 0, v31")
for c in range(2):
    a(f"s_waitcnt vmcnt({1-c})")
    a(f"ds_write_b128 v150, {v(20+4*c,4)} offset:{512+1024*c}")
    a(cs2(36, 20+4*c, 21+4*c)); a(cs2(36, 22+4*c, 23+4*c))
if OPT.get("nochk"): a("s_branch L_uok")
wave_sum_zero(36)
a("s_cbranch_scc1 L_uok")
a(f"s_cmp_lt_u32 s44, {SPIN_MAX}")
a("s_cbranch_scc1 L_uretry")
a.label("L_uok")
pp(15, 8, 44)
lds_add(F_LAND, vaddr=151)
lds_add(F_CRDY)
lds_wait(F_LAND, 2, vaddr=151, sleep=0)
trace()
pp(5, 8)
a(f"s_setprio {OPT['prioC']}")
for z in range(7, -1, -1): a(rdB(0, z))
for t in range(7, -1, -1):
    a(f"s_waitcnt lgkmcnt({t})")
    a(f"{MF} {v(CACC+4*t,4)}, {v(AD,4)}, {v(cb(0,t),4)}, 0")
seq = []
for st in range(2):
    seq.append(("adv",))
    pend = [("r", rdB(1 - st, z), ("B", z, 1 - st)) for z in range(7, -1, -1)]
    for m in range(8):
        for k_, t in enumerate(range(7, m - 1, -1)):
            seq.append(("m", f"{MF} {v(CACC+4*t,4)}, {v(CA+4*m,4)}, {v(cb(st,t-m),4)}, {v(CACC+4*t,4)}", [("A", m, st), ("B", t - m, st)]))
            if pend and k_ % 2 == 1: seq.append(pend.pop(0))
        pend = [("r", x, ("A", m, 1 - st)) for x in rdA(m)] + pend
        if m >= 5:
            while pend: seq.append(pend.pop(0))
    assert not pend
    seq.append(("chk", st))
n = len(seq)
a.label("L_cloop")
out_cnt = 99
for i, it in enumerate(seq):
    if it[0] == "adv":
        if OPT["cprio"]:
            lb = a.newlabel("Lcp")
            for k in (3, 2, 1):
                a(f"s_setprio {k}")
                a(f"s_cmp_gt_u32 s{sNST}, {k}")
                a(f"s_cbranch_scc1 {lb}")
            a("s_setprio 0")
            a.label(lb)
        conv_adv(); continue
    if it[0] == "chk":
        a(f"s_sub_u32 s{sNST}, s{sNST}, 1")
        a(f"s_cmp_eq_u32 s{sNST}, 0")
        a("s_cbranch_scc1 L_cexit" if it[1] == 0 else "s_cbranch_scc0 L_cloop")
        continue
    if it[0] == "r":
        if out_cnt >= 14:
            a("s_waitcnt lgkmcnt(12)"); out_cnt = 12
        a(it[1]); out_cnt += 1
        continue
    best = None; cnt = 0
    for back in range(1, n + 1):
        p = seq[(i - back) % n]
        if p[0] == "r":
            if p[2] in it[2]:
                best = cnt; break
            cnt += 1
    assert best is not None
    if best < out_cnt:
        w = min(best, 15)
        a(f"s_waitcnt lgkmcnt({w})"); out_cnt = w
    a(it[1])
a.label("L_cexit")
a("s_waitcnt lgkmcnt(0)")
lds_add(F_CVD)
for pr in range(4):
    b = CA + 4 * pr
    pack(b, CACC + 8 * pr)
    pack(b + 2, CACC + 8 * pr + 4)
    a(f"v_permlane16_swap_b32 v{b}, v{b+2}")
    a(f"v_permlane16_swap_b32 v{b+1}, v{b+3}")
    a(f"global_store_dwordx4 v148, {v(b,4)}, s[{sWS}:{sWS+1}] offset:{1024*pr} sc1")
TS = 80
for pr in range(4): a(cs2(TS+pr, CA+4*pr, CA+4*pr+1, False))
for pr in range(4): a(cs2(TS+pr, CA+4*pr+2, CA+4*pr+3))
a(f"v_permlane32_swap_b32 v{TS}, v{TS+1}")
a(f"v_permlane32_swap_b32 v{TS+2}, v{TS+3}")
a(f"v_add_u32 v{TS}, v{TS}, v{TS+1}")
a(f"v_add_u32 v{TS+2}, v{TS+2}, v{TS+3}")
for qp in ("[1,0,3,2]", "[2,3,0,1]"):
    for r in (TS, TS + 2): a(f"v_add_u32_dpp v{r}, v{r}, v{r} quad_perm:{qp} row_mask:0xf bank_mask:0xf")
a("s_mov_b32 exec_lo, 0x22222222"); a("s_mov_b32 exec_hi, 0x22222222")
a(f"v_mov_b32 v{TS}, v{TS+2}")
a("s_mov_b32 exec_lo, 0x33333333"); a("s_mov_b32 exec_hi, 0x33333333")
a(f"ds_add_u32 v152, v{TS}")
a("s_mov_b64 exec, -1")
trace()
if OPT["ydrain"] == 2: a("s_waitcnt vmcnt(0)")
lds_add_rtn(F_YST, sT2)
a(f"s_mov_b64 s[{sCM}:{sCM+1}], 0")
a(f"s_cmp_lg_u32 s{sT2}, 9")
a("s_cbranch_scc1 L_a_noyflag")
a(f"v_lshlrev_b32 v{vT0}, 2, v{vLANE}")
a(f"v_add_u32 v{vT0}, {ZR}, v{vT0}")
a(f"ds_read_b32 v{cVAL}, v{vT0}")
a(f"v_mov_b32 v{cADR}, v153")
a(f"s_mov_b64 s[{sCM}:{sCM+1}], -1")
a("s_waitcnt lgkmcnt(0)")
if OPT["ydrain"]: a("s_waitcnt vmcnt(0)")
cell_add()
a.label("L_a_noyflag")
a(f"s_cmp_ge_u32 s{sWV}, 4")
a("s_cbranch_scc1 L_tail")
trace()
cell_verify()
a("s_branch L_aux")
a.label("L_end")
a("s_endpgm")
a.label("L_codeend")

lines, nn = hazard.run(a.lines)
hdr = open("/code/" + NAME + ".s.ref").read().split("; Override launch geometry")[0]
sys.stdout.write(hdr + header([f"@launch grid=(256,1,1) block=({64*NW},1,1) lds={LDS_BYTES}"]) + kernel_begin(KNAME) + "\n".join(lines) + "\n"
                 + kernel_desc(KNAME, NVGPR, 102, NVGPR).replace(".end_amdhsa_kernel\n.text\n", ".end_amdhsa_kernel\n"))
sys.stderr.write(f"instructions: {len(lines)}, nop states inserted: {nn}\n")
```

```python
import sys, math, struct
from asmlib import *
import hazard

STAMPS_ON = "stamps" in sys.argv
O = dict(ng=3, rotx=1, br=6, ki=0, vi=0, kd=0, kb=2, us=3, ub=7, ui=8, hi=8, ht=1, prioQ=3, ssig=0, ft=2, xp=3, cwo=0, pat=0, map=0, osc=0, cpre=0, cwa=50, xt=0, xtd=0, one=0, cdel=0, s0w=5, xsl=0, prioW=1, prioL=1, prioG=2, prioC=0, prioK=3, pf=1, ck=0, gtr=0, per=1, fine=0, uft=1, tlb=1,
         wpre=0, ofl=0, la=4, re=2, cearly=0, prioB=0, csl=8, gwt=9, lj=5, xz=0, r2=0, solo=0, bmode=3, al=0, g0s=0, lden=2, ldis=4, prioH=1, wot=0, nd=0, lmid=4, hd=0)
for x in sys.argv[1:]:
    if "=" in x:
        k, val = x.split("="); O[k] = int(val)
KNAME = NAME + "_kernel"
NW = 12
EPOCH = 0; UF = 0x10000; GT = 0x20000; GB = 0x40000
UWS = 0x100000; YWS = 0x380000; OWS = 0x610000; XWS = 0x8B0000; TRACE = 0xC00000
WSN = 0x1000000
XU = 14336; SLOT = XU + 24576
CBG = 3 * SLOT
KVS = 0; HB = 16896; HCH = 8320; HOO = 4160; UB = HB + 2 * HCH; CSZ = UB + 9216
GW = CBG + CSZ; FL = GW + 1280
QA = 81920; QT = 10240
LDS_BYTES = 163840
assert FL + 512 <= LDS_BYTES and 1024 + 3 * CSZ <= GW and QA + 5 * QT <= CBG + HB and QA >= 2 * SLOT
F_UL = 0; F_MG = 4; F_YD = 20
F_EA = 0; F_WO = 4; F_XL = 8; F_QG = 12; F_LD = 16; F_ED = 24; F_GQ = 40; F_YL = 48; F_XM = 64
FLG = FL + 192; GTB = FL + 320
MRG = QA + 5 * QT - 16384; F_HB = 32; GQA = CBG + HB; XCH = QA
EARLY = [0, 1, 4, 5, 7, 8, 10, 11, 13, 14]; LATE = [2, 15, 3, 6, 9, 12]
ORDER = EARLY + LATE + [16 + h for h in EARLY + LATE]
assert GTB + 384 <= LDS_BYTES
NEG = 0xf149f2ca
NVGPR = 168
SPIN_MAX = 1 << 20

a = Asm()
sX, sK, sV, sSH, sSSM, sDD, sWQ, sWO, sGW, sOUT, sDBG, sWS = 4, 6, 8, 10, 12, 14, 18, 20, 22, 24, 26, 28
sRB, sSG, sWV, sTAG, sST0, sROLE, sSGL, sPH = 30, 31, 32, 33, 34, 35, 36, 37
sT0, sT1, sT2, sT3, sSPIN = 96, 97, 98, 99, 100
vLANE, vN, vG, vFL, vT0, vT1, vT2, vT3 = 0, 1, 2, 3, 4, 5, 6, 7
vTR = 167
def v(i, n=1): return f"v{i}" if n == 1 else f"v[{i}:{i+n-1}]"
def s(i, n=1): return f"s{i}" if n == 1 else f"s[{i}:{i+n-1}]"
def f2u(x): return struct.unpack("<I", struct.pack("<f", x))[0]
MF = "v_mfma_f32_16x16x32_bf16"

def trace():
    if not STAMPS_ON: return
    a("s_mov_b32 s93, m0"); a("s_mov_b32 m0, s95"); a(f"v_writelane_b32 v{vTR}, s90, m0"); a("s_mov_b32 m0, s93")
    a("s_mov_b32 s95, s94"); a("s_add_u32 s94, s94, 1"); a("s_memtime s[90:91]" if O["ck"] else "s_memrealtime s[90:91]")
def trace_at(i):
    if not STAMPS_ON: return
    a(f"s_mov_b32 s94, {i}"); trace()
def finish():
    if STAMPS_ON:
        trace_at(61)
        a("s_mov_b64 exec, -1"); a("s_waitcnt lgkmcnt(0)"); a("s_mov_b32 m0, s95"); a(f"v_writelane_b32 v{vTR}, s90, m0")
        a(f"v_writelane_b32 v{vTR}, s88, 63")
        a(f"s_mul_i32 s{sT0}, s2, {NW}"); a(f"s_add_u32 s{sT0}, s{sT0}, s{sWV}"); a(f"s_lshl_b32 s{sT1}, s{sT0}, 8"); a(f"s_add_u32 s{sT1}, s{sT1}, {TRACE}")
        a(f"v_lshl_add_u32 v{vT0}, v{vLANE}, 2, s{sT1}"); a(f"global_store_dword v{vT0}, v{vTR}, s[{sWS}:{sWS+1}]")
    a("s_endpgm")
def spin_tail(l, mul=1):
    a(f"s_add_u32 s{sSPIN}, s{sSPIN}, 1"); a(f"s_cmp_lt_u32 s{sSPIN}, {SPIN_MAX * mul}"); a(f"s_cbranch_scc1 {l}")
def lds_wait(off, val, vaddr=vFL, vt=vT0, sleep=0):
    l = a.newlabel("Lw"); d = a.newlabel("Lwd")
    a(f"s_mov_b32 s{sSPIN}, 0"); a.label(l)
    a(f"ds_read_b32 v{vt}, v{vaddr} offset:{off}"); a("s_waitcnt lgkmcnt(0)")
    a(f"v_readfirstlane_b32 s{sT3}, v{vt}"); a(f"s_cmp_ge_u32 s{sT3}, {val}"); a(f"s_cbranch_scc1 {d}")
    if sleep: a(f"s_sleep {sleep}")
    spin_tail(l, 8); a.label(d)
def lds_set(off, val, vaddr=vFL, vt=vT0):
    a(f"v_mov_b32 v{vt}, {val}"); a(f"ds_write_b32 v{vaddr}, v{vt} offset:{off}")
def lds_add(off, vaddr=vFL, vt=vT0):
    a(f"v_mov_b32 v{vt}, 1"); a("s_mov_b64 exec, 1"); a(f"ds_add_u32 v{vaddr}, v{vt} offset:{off}"); a("s_mov_b64 exec, -1")
def lds_add_rtn(off, sdst, vaddr=vFL, vt=vT0):
    a(f"v_mov_b32 v{vt}, 1"); a("s_mov_b64 exec, 1"); a(f"ds_add_rtn_u32 v{vt}, v{vaddr}, v{vt} offset:{off}")
    a("s_waitcnt lgkmcnt(0)"); a(f"v_readfirstlane_b32 s{sdst}, v{vt}"); a("s_mov_b64 exec, -1")
def pack(dst, src):
    a(f"v_cvt_pk_bf16_f32 v{dst}, v{src}, v{src+1}"); a(f"v_cvt_pk_bf16_f32 v{dst+1}, v{src+2}, v{src+3}")
def emit_seq(seq, cyclic, out0=15):
    n = len(seq); out_cnt = 99 if cyclic else out0
    for i, it in enumerate(seq):
        if it[0] == "t": it[1](); continue
        if it[0] == "r":
            if 15 <= out_cnt < 99 or (out_cnt >= 99 and not cyclic):
                a("s_waitcnt lgkmcnt(13)"); out_cnt = 13
            a(it[1]); out_cnt += 1; continue
        best = None; cnt = 0
        for back in range(1, (n if cyclic else i) + 1):
            p = seq[(i - back) % n]
            if p[0] == "r":
                if p[2] in it[2]:
                    best = cnt; break
                cnt += 1
        assert best is not None, it
        if best < out_cnt:
            w = min(best, 15); a(f"s_waitcnt lgkmcnt({w})"); out_cnt = w
        a(it[1])
def T(x): return ("t", lambda x=x: a(x))
def mk_tag():
    a(f"s_mul_i32 s{sTAG}, s{sTAG}, 1664525"); a(f"s_add_u32 s{sTAG}, s{sTAG}, 1013904223")
def epoch_count():
    d = a.newlabel("Lep")
    a(f"s_mov_b32 s{sT0}, 1"); a(f"s_atomic_add s{sT0}, s[{sDBG}:{sDBG+1}], 0 glc"); a("s_waitcnt lgkmcnt(0)")
    a(f"s_cmp_lg_u32 s{sT0}, 39"); a(f"s_cbranch_scc1 {d}")
    a(f"s_atomic_swap s{sTAG}, s[{sWS}:{sWS+1}], {EPOCH}")
    a.label(d)
def slots_check(first, n, sp):
    for j in range(0, n, 2): a(f"s_xor_b64 s[{first+j}:{first+j+1}], s[{first+j}:{first+j+1}], s[{sp}:{sp+1}]")
    for j in range(2, n, 2): a(f"s_or_b64 s[{first}:{first+1}], s[{first}:{first+1}], s[{first+j}:{first+j+1}]")
    a(f"s_cmp_eq_u64 s[{first}:{first+1}], 0")

def poll8(lbl, base, off, n, width, fail=None):
    if fail is None:
        a(f"s_mov_b32 s{sSPIN}, 0"); a.label(lbl)
        a(f"s_add_u32 s{sSPIN}, s{sSPIN}, 1"); a(f"s_cmp_ge_u32 s{sSPIN}, {SPIN_MAX}"); a(f"s_cbranch_scc1 {lbl}d")
        a(f"s_load_dwordx{width} s[4:{3+width}], s[{base}:{base+1}], {off} glc")
    a("s_waitcnt lgkmcnt(0)")
    for k in range(n):
        a(f"s_cmp_lg_u32 s{4+2*k}, s{sTAG}"); a(f"s_cbranch_scc1 {fail or lbl}")
    if fail is None: a.label(lbl + "d")
def gblock(sd, seg, rb, extra):
    a(f"s_lshl_b32 s{sd}, s{seg}, 5"); a(f"s_add_u32 s{sd}, s{sd}, s{rb}"); a(f"s_lshl_b32 s{sd}, s{sd}, 11"); a(f"s_add_u32 s{sd}, s{sd}, {GB + extra}")
def ptr(sd, soff):
    a(f"s_add_u32 s{sd}, s{sWS}, s{soff}"); a(f"s_addc_u32 s{sd+1}, s{sWS+1}, 0")
def wo_setup(vWM, srd_):
    a(f"v_lshrrev_b32 v{vT0}, 3, v{vLANE}"); a(f"v_and_b32 v{vT1}, 7, v{vLANE}")
    a(f"v_mul_u32_u24 v{vT0}, 1280, v{vT0}"); a(f"v_lshlrev_b32 v{vT2}, 1, v{vG}"); a(f"v_xor_b32 v{vT1}, v{vT1}, v{vT2}")
    a(f"v_lshl_add_u32 v{vT0}, v{vT1}, 4, v{vT0}"); a(f"s_lshl_b32 s{sT0}, s{sSG}, 7"); a(f"v_add_u32 v{vWM}, s{sT0}, v{vT0}")
    a(f"v_lshrrev_b32 v{vT0}, 5, v{vLANE}")
    for k, d in enumerate((1, 3, 13)):
        a(f"v_mul_u32_u24 v{vT1}, {(20*d-4)*1280}, v{vT0}"); a(f"v_add_u32 v{vWM+1+k}, v{vWM}, v{vT1}")
    srd(a, srd_, sWO, sWO + 1, 640 * 1280)
NE = 6
def kinfo(kh, j):
    return ("m", 8 * kh + (j if j < 5 else j - 1)) if j not in (5, 9) else ("x", 2 * kh + (j == 9))
def wo_lds(kh, j): return 4096 * (10 * kh + j)
def wo_blocks(ks, vWM, srd_):
    for kh, j in ks:
        if j < 5:
            a(f"s_sub_u32 s{sT0}, {j}, s{sSGL}"); a(f"s_cselect_b32 s{sT1}, {5 + 10*kh}, {10*kh}"); a(f"s_add_u32 s{sT0}, s{sT0}, s{sT1}"); a(f"s_lshl_b32 m0, s{sT0}, 12")
        else: a(f"s_mov_b32 m0, {wo_lds(kh, j)}")
        kind, x = kinfo(kh, j)
        for i in range(4):
            if kind == "m": reg, row = vWM, 20 * ORDER[2*x + (i & 1)] + 8 * (i >> 1)
            else:
                ha, hb = ORDER[8*x + 2*i], ORDER[8*x + 2*i + 1]
                reg, row = vWM + 1 + (1, 3, 13).index(hb - ha), 20 * ha + 16
            a(f"s_mov_b32 s{sT0}, {row*1280 - 1024*i}")
            a(f"buffer_load_dwordx4 v{reg}, s[{srd_}:{srd_+3}], s{sT0} offen offset:{1024*i} lds")
PRE = [(1, j) for j in range(9)][:O["wpre"]]
POST = [(kh, j) for j in range(10) for kh in range(2) if (kh, j) not in PRE]
assert wo_lds(1, 0) >= SLOT and wo_lds(1, 9) <= 2 * SLOT

sW, sCB, sCH, sPAIR, sUI, sDV, sMRG, sCS, sUFA, sTG2, sHL, sHG, sHE, sTB = 40, 41, 42, 43, 52, 53, 54, 55, 56, 58, 60, 61, 62, 63
if STAMPS_ON: a("s_memtime s[88:89]" if O["ck"] else "s_memrealtime s[88:89]")
a("s_load_dwordx16 s[4:19], s[0:1], 0"); a("s_load_dwordx8 s[20:27], s[0:1], 64"); a("s_load_dwordx2 s[28:29], s[0:1], 96")
a(f"s_lshr_b32 s{sT0}, s2, 3")
if O["pf"]:
    a("s_getpc_b64 s[46:47]"); a.label("L_pc")
    a(f"s_lshl_b32 s{sT1}, s{sT0}, 7")
    a(f"v_lshl_add_u32 v{vT1}, v0, 12, s{sT1}")
    a(f"v_cmp_gt_u32 vcc, L_codeend-L_pc-4, v{vT1}")
    a("s_and_saveexec_b64 s[48:49], vcc"); a("s_cbranch_execz L_nopf")
    a(f"global_load_dword v166, v{vT1}, s[46:47]")
    a.label("L_nopf")
    a("s_mov_b64 exec, -1")
a(f"v_lshrrev_b32 v{vT0}, 6, v0"); a(f"v_and_b32 v{vLANE}, 63, v0"); a(f"v_readfirstlane_b32 s{sWV}, v{vT0}")
a("s_cmp_ge_u32 s2, 256"); a("s_cbranch_scc1 L_end")
if STAMPS_ON:
    a(f"v_mov_b32 v{vTR}, 0"); a("s_mov_b32 s95, 62"); a("s_mov_b32 s94, 0"); a("s_mov_b32 s90, 0")
a(f"v_lshrrev_b32 v{vG}, 4, v{vLANE}"); a(f"v_and_b32 v{vN}, 15, v{vLANE}")
a(f"v_lshrrev_b32 v{vT0}, 3, v{vLANE}"); a(f"v_and_b32 v{vT1}, 7, v{vLANE}")
a(f"s_bfe_u32 s{sT1}, s2, {1 | (2 << 16)}")
if O["map"]:
    a(f"s_and_b32 s{sT3}, s{sT1}, 1"); a(f"s_mul_i32 s{sT3}, s{sT3}, 5")
    a(f"s_mul_i32 s{sT2}, s{sT1}, 55"); a(f"s_sub_u32 s{sT2}, s{sT2}, s{sT3}"); a(f"s_lshr_b32 s{sT2}, s{sT2}, 1")
    a(f"s_sub_u32 s{sT3}, s{sT0}, s{sT3}"); a(f"s_and_b32 s{sSG}, s2, 1")
    a(f"s_cmp_ge_i32 s{sT3}, 25"); a(f"s_cselect_b32 s{sROLE}, 1, 0"); a("s_cbranch_scc1 L_a")
else:
    a(f"s_mul_i32 s{sT2}, s{sT1}, 55"); a(f"s_add_u32 s{sT2}, s{sT2}, 1"); a(f"s_lshr_b32 s{sT2}, s{sT2}, 1")
    a(f"s_and_b32 s{sT3}, s{sT1}, 1"); a(f"s_add_u32 s{sT3}, s{sT3}, s{sT0}")
    a(f"s_and_b32 s{sSG}, s2, 1")
    a(f"s_cmp_ge_u32 s{sT3}, 28"); a(f"s_cselect_b32 s{sROLE}, 1, 0"); a("s_cbranch_scc1 L_a")
a(f"s_add_u32 s{sT0}, s{sT2}, s{sT0}")
a(f"s_mul_i32 s{sPAIR}, s{sSG}, 110"); a(f"s_add_u32 s{sPAIR}, s{sPAIR}, s{sT0}")
a(f"s_mul_i32 s{sRB}, s{sT0}, 205"); a(f"s_lshr_b32 s{sRB}, s{sRB}, 10")
a(f"s_mul_i32 s{sT1}, s{sRB}, 5"); a(f"s_sub_u32 s{sSGL}, s{sT0}, s{sT1}")
a(f"s_mul_i32 s{sSG}, s{sSG}, 5"); a(f"s_add_u32 s{sSG}, s{sSGL}, s{sSG}")
sSEQ, sGAM = 38, 3
NG = O["ng"]
PAT = {0: None, 1: [2, 2, 3, 3], 2: [2, 3, 3, 2], 3: [1, 3, 3, 3], 4: [2, 1, 1, 3, 3], 5: [3, 1, 3, 3], 6: [3, 1, 2, 2, 2], 7: [2, 2, 2, 1, 3]}[O["pat"]]
def perm(g, it):
    if PAT:
        b = 0
        for n in PAT:
            if it < b + n: return b + (it - b + g) % 3 if n == 3 else it
            b += n
    if NG == 0: return it
    if NG == 1: return (it + 5 * g) % 10
    b = it // NG * NG; n = min(NG, 10 - b)
    return b + (it - b + g) % n
def seqtab(inv, sd):
    for g in range(max(NG, 2) if NG else 1):
        t = [perm(g, it) for it in range(10)]
        if inv: t = [t.index(x) for x in range(10)]
        val = sum(x << (4 * k) for k, x in enumerate(t))
        if g: a(f"s_cmp_eq_u32 s{sGAM}, {g}"); a(f"s_cselect_b32 s{sd}, {hex(val & 0xffffffff)}, s{sd}"); a(f"s_cselect_b32 s{sd+1}, {hex(val >> 32)}, s{sd+1}")
        else: a(f"s_mov_b32 s{sd}, {hex(val & 0xffffffff)}"); a(f"s_movk_i32 s{sd+1}, {hex(val >> 32)}")
    if PAT and 2 in PAT:
        m = 0; b = 0
        for n in PAT:
            if n == 2:
                assert b % 2 == 0; m |= 0x11 << (4 * b)
            b += n
        a(f"s_add_u32 s{sT0}, s{sRB}, s{sSGL}"); a(f"s_and_b32 s{sT0}, s{sT0}, 1")
        if m >> 32: a(f"s_mul_i32 s{sT3}, s{sT0}, {m >> 32}"); a(f"s_xor_b32 s{sd+1}, s{sd+1}, s{sT3}")
        a(f"s_mul_i32 s{sT0}, s{sT0}, {hex(m & 0xffffffff)}"); a(f"s_xor_b32 s{sd}, s{sd}, s{sT0}")
def next_stage(sd):
    a(f"s_and_b32 s{sd}, s{sSEQ}, 15"); a(f"s_lshr_b64 s[{sSEQ}:{sSEQ+1}], s[{sSEQ}:{sSEQ+1}], 4"); a(f"s_add_u32 s{sd}, s{sd}, s{sST0}")
    a(f"s_sub_u32 s{sT0}, s{sd}, 10"); a(f"s_cselect_b32 s{sd}, s{sd}, s{sT0}")
a(f"s_add_u32 s{sGAM}, s{sRB}, s{sSGL}")
if NG in (1, 2, 4): a(f"s_and_b32 s{sGAM}, s{sGAM}, {max(NG, 2) - 1}")
elif NG:
    a(f"s_mul_i32 s{sT1}, s{sGAM}, {[0,0,0,86,0,52][NG]}"); a(f"s_lshr_b32 s{sT1}, s{sT1}, 8"); a(f"s_mul_i32 s{sT1}, s{sT1}, {NG}"); a(f"s_sub_u32 s{sGAM}, s{sGAM}, s{sT1}")
if not O["rotx"]: a(f"s_mov_b32 s{sST0}, 0")
if O["rotx"]:
    tb = {1: [0, 5, 3, 8, 5, 0, 8, 3], 2: [0, 2, 1, 3, 2, 4, 4, 1], 3: [0, 3, 1, 4, 3, 0, 4, 2], 4: [0, 0, 3, 3, 5, 5, 8, 8], 5: [0, 3, 3, 6, 6, 9, 8, 1], 6: [0, 4, 2, 6, 4, 8, 6, 0], 7: [0, 6, 3, 9, 6, 2, 9, 5]}[O["rotx"]]
    a(f"s_lshl_b32 s{sT1}, s2, 2"); a(f"s_lshr_b32 s{sT1}, {hex(sum(x << (4*k) for k, x in enumerate(tb)))}, s{sT1}"); a(f"s_and_b32 s{sST0}, s{sT1}, 15")
if O["solo"]:
    a(f"s_and_b32 s{sT1}, s{sWV}, 12"); a(f"s_cmp_lg_u32 s{sT1}, 4"); a("s_cbranch_scc1 L_end")
a(f"s_cmp_ge_u32 s{sWV}, 3"); a("s_cbranch_scc1 L_notld")

a("s_setprio 3")
vAE, vAO = 8, 9
SRD = 40
sSO, sIT, sSL, sST, sU, sXH, sIA, sIB, sSM = 50, 51, 52, 53, 54, 55, 56, 57, 58
a(f"s_mov_b32 s{sIT}, 0"); seqtab(False, sSEQ); next_stage(sST)
a(f"s_mul_i32 s{sT1}, s{sRB}, {96*1280}"); a(f"s_sub_u32 s{sXH}, s{sT1}, {16*1280}"); a(f"s_cselect_b32 s{sXH}, 0x40000000, s{sXH}")
a(f"s_mul_i32 s{sSL}, s{sWV}, 12288"); a(f"s_add_u32 s{sSL}, s{sSL}, 2048")
a(f"s_mul_i32 s{sU}, s{sWV}, {32*3840}"); a(f"s_lshl_b32 s{sT0}, s{sSG}, 7"); a(f"s_add_u32 s{sU}, s{sU}, s{sT0}"); a(f"s_sub_u32 s{sU}, s{sU}, {32*3840}")
a(f"s_min_u32 s{sT2}, s{sWV}, 1")
a(f"v_lshlrev_b32 v{vT2}, s{sT2}, v{vG}"); a(f"v_and_b32 v{vT2}, 3, v{vT2}"); a(f"v_xor_b32 v{vT1}, v{vT1}, v{vT2}")
a(f"s_mul_i32 s{sT3}, s{sT2}, 2560"); a(f"s_add_u32 s{sT3}, s{sT3}, 1280")
a(f"v_mul_u32_u24 v{vT0}, s{sT3}, v{vT0}"); a(f"v_lshl_add_u32 v{vAE}, v{vT1}, 4, v{vT0}"); a(f"v_xor_b32 v{vAO}, 64, v{vAE}")
a(f"s_lshl_b32 s{sIA}, s{sT3}, 3")
a(f"s_mov_b32 s{SRD+3}, 0x00020000")
a(f"s_cmp_eq_u32 s{sWV}, 0")
a(f"s_cselect_b32 s{sU}, s{sT1}, s{sU}"); a(f"s_cselect_b32 s{sIB}, s{sIA}, {(1280 - 24*3840) & 0xffffffff}")
a(f"s_movk_i32 s{sSM}, 128"); a(f"s_cselect_b32 s{sSM}, s{sSM}, {64*3840}")
a(f"s_mov_b32 s{SRD+2}, {2048*1280}"); a(f"s_cselect_b32 s{SRD+2}, s{SRD+2}, {640*3840}")
a("s_waitcnt lgkmcnt(0)")
a(f"s_cselect_b64 s[{SRD}:{SRD+1}], s[{sX}:{sX+1}], s[{sWQ}:{sWQ+1}]")
trace()
a.label("L_ld")
a(f"s_mov_b32 m0, s{sSL}")
a(f"s_mul_i32 s{sT0}, s{sST}, s{sSM}"); a(f"s_add_u32 s{sSO}, s{sT0}, s{sU}")
for i in range(12):
    a(f"buffer_load_dwordx4 v{vAE + (i & 1)}, s[{SRD}:{SRD+3}], s{sSO} offen lds")
    if i < 11:
        a("s_add_u32 m0, m0, 1024"); a(f"s_add_u32 s{sSO}, s{sSO}, s{sIB if i % 4 == 3 else sIA}")
a(f"s_cmp_lg_u32 s{sWV}, 0"); a("s_cbranch_scc1 L_ldw")
a(f"s_sub_u32 m0, s{sSL}, 2048"); a(f"s_add_u32 s{sSO}, s{sT0}, s{sXH}")
a(f"buffer_load_dwordx4 v{vAE}, s[{SRD}:{SRD+3}], s{sSO} offen lds")
a("s_add_u32 m0, m0, 1024"); a(f"s_add_u32 s{sSO}, s{sSO}, s{sIA}")
a(f"buffer_load_dwordx4 v{vAO}, s[{SRD}:{SRD+3}], s{sSO} offen lds")
a.label("L_ldw")
a(f"s_add_u32 s{sSL}, s{sSL}, {SLOT}"); a(f"s_cmp_ge_u32 s{sSL}, {3*SLOT}"); a(f"s_cselect_b32 s{sT0}, {3*SLOT}, 0"); a(f"s_sub_u32 s{sSL}, s{sSL}, s{sT0}")
next_stage(sST)
a(f"s_add_u32 s{sIT}, s{sIT}, 1")
if O["one"]:
    a(f"s_cmp_eq_u32 s{sIT}, 2"); a("s_cbranch_scc1 L_ld")
    a(f"s_cmp_lg_u32 s{sIT}, 1"); a("s_cbranch_scc1 L_ld1"); a("s_waitcnt vmcnt(0)"); a.label("L_ld1")
else: a(f"s_cmp_lt_u32 s{sIT}, 2"); a("s_cbranch_scc1 L_ld")
a(f"s_cmp_lg_u32 s{sIT}, 3"); a("s_cbranch_scc1 L_ldt")
a(f"s_load_dword s{sTAG}, s[{sWS}:{sWS+1}], {EPOCH}")
a.label("L_ldt")
a("s_waitcnt vmcnt(14) lgkmcnt(0)")
a(f"s_cmp_eq_u32 s{sWV}, 0"); a("s_cbranch_scc1 L_ldb")
a("s_waitcnt vmcnt(12)")
a.label("L_ldb")
trace(); a("s_barrier")
a(f"s_cmp_lt_u32 s{sIT}, 10"); a("s_cbranch_scc1 L_ld")
a("s_setprio 0")
a(f"v_mov_b32 v{vFL}, {FLG}"); a(f"s_mov_b32 s{sPH}, 1")
a(f"s_cmp_lg_u32 s{sWV}, 0"); a("s_cbranch_scc1 L_ps")
a("s_branch L_s0")

SRD_A, SRD_B = 44, 48
vKA, vSH = 22, 21
vRP, vRZ, vRM, vRV, vUS, vL16, vRO, KM = 8, 9, 10, 13, 11, 12, 16, 17
a.label("L_a")
if O["solo"]: a("s_endpgm")
a(f"s_lshl_b32 s{sT1}, s{sT1}, 5"); a(f"s_sub_u32 s{sT1}, s{sT1}, s{sT2}"); a(f"s_add_u32 s{sT1}, s{sT1}, s{sT3}")
a(f"s_lshl1_add_u32 s{sT1}, s{sT1}, s{sSG}"); a(f"s_sub_u32 s{sT1}, s{sT1}, {50 if O['map'] else 56}")
a(f"s_lshr_b32 s{sT0}, s{sWV}, 2"); a(f"s_lshl_b32 s{sT2}, s{sT0}, 5"); a(f"s_add_u32 s{sPAIR}, s{sT2}, s{sT1}")
a(f"s_mul_i32 s{sCB}, s{sT0}, {CSZ}"); a(f"s_add_u32 s{sCB}, s{sCB}, 1024"); a(f"s_mov_b32 s{sMRG}, s{sCB}")
a(f"s_cmp_lt_u32 s{sT1}, 32"); a("s_cbranch_scc1 L_c")
a(f"s_add_u32 s{sPAIR}, s{sPAIR}, 284"); a(f"s_cmp_eq_u32 s{sT0}, 0"); a("s_cbranch_scc1 L_c")
a("s_branch L_idle")
a.label("L_notld")
a(f"s_cmp_lt_u32 s{sWV}, 8"); a("s_cbranch_scc1 L_hg")
a(f"s_add_u32 s{sPAIR}, s{sPAIR}, 96"); a(f"s_mov_b32 s{sCB}, {CBG}"); a(f"s_mov_b32 s{sMRG}, {MRG}")
a.label("L_c")
a(f"s_and_b32 s{sW}, s{sWV}, 3"); a(f"s_lshr_b32 s{sCS}, s{sPAIR}, 5"); a(f"s_and_b32 s{sTB}, s{sPAIR}, 31")
a(f"v_mul_u32_u24 v{vT0}, 1280, v{vT0}"); a(f"v_lshrrev_b32 v{vT2}, 1, v{vG}"); a(f"v_xor_b32 v{vT1}, v{vT1}, v{vT2}")
a(f"s_lshl_b32 s{sT0}, s{sW}, 2"); a(f"s_and_b32 s{sT0}, s{sT0}, 4"); a(f"v_xor_b32 v{vT1}, s{sT0}, v{vT1}"); a(f"v_lshl_add_u32 v{vKA}, v{vT1}, 4, v{vT0}")
a(f"v_xor_b32 v{vKA+1}, 32, v{vKA}")
a(f"s_lshl2_add_u32 s{sT0}, s{sCS}, s{sW}"); a(f"s_lshl_b32 s{sT0}, s{sT0}, 7"); a(f"v_lshl_add_u32 v{vSH}, v{vN}, 3, s{sT0}")
a(f"v_lshlrev_b32 v{vL16}, 4, v{vLANE}")
a(f"s_lshr_b32 s{sT0}, s{sW}, 1"); a(f"s_lshl1_add_u32 s{sCH}, s{sPAIR}, s{sT0}")
a(f"s_mul_i32 s{sT0}, s{sT0}, {HCH}"); a(f"s_add_u32 s{sT0}, s{sT0}, s{sCB}"); a(f"s_add_u32 s{sHE}, s{sT0}, {HB + 64}")
a(f"s_and_b32 s{sT1}, s{sW}, 1"); a(f"s_lshl_b32 s{sT2}, s{sT1}, 11"); a(f"s_add_u32 s{sHL}, s{sT2}, s{sHE}")
a(f"s_lshl_b32 s{sT0}, s{sCH}, 12"); a(f"s_add_u32 s{sHG}, s{sT0}, s{sT2}")
a(f"s_mov_b32 s{SRD_A+2}, {2048*1280}"); a(f"s_mov_b32 s{SRD_A+3}, 0x00020000"); a(f"s_mov_b64 s[{SRD_B+2}:{SRD_B+3}], s[{SRD_A+2}:{SRD_A+3}]")
def kv_issue(parts):
    a(f"s_lshl2_add_u32 s{sT0}, s{sTB}, s{sW}"); a(f"s_mul_i32 s{sT0}, s{sT0}, {16*1280}"); a(f"s_lshl_b32 s{sT1}, s{sCS}, 7"); a(f"s_add_u32 s{sT0}, s{sT0}, s{sT1}")
    a(f"s_lshl_b32 s{sT1}, s{sW}, 11"); a(f"s_add_u32 s{sT1}, s{sT1}, s{sCB}"); a(f"s_add_u32 m0, s{sT1}, {512 + 8192}")
    a(f"s_add_u32 s{sT2}, s{sT0}, {10240 - 1024}")
    a("s_waitcnt lgkmcnt(0)")
    if "v" in parts:
        a(f"s_mov_b64 s[{SRD_B}:{SRD_B+1}], s[{sV}:{sV+1}]")
        a(f"buffer_load_dwordx4 v{vKA}, s[{SRD_B}:{SRD_B+3}], s{sT0} offen lds")
        a(f"buffer_load_dwordx4 v{vKA+1}, s[{SRD_B}:{SRD_B+3}], s{sT2} offen offset:1024 lds")
    if "k" in parts:
        d = a.newlabel("Lkv")
        a("s_sub_u32 m0, m0, 8192"); a(f"s_mov_b64 s[{SRD_A}:{SRD_A+1}], s[{sK}:{sK+1}]")
        a(f"buffer_load_dwordx4 v{vKA}, s[{SRD_A}:{SRD_A+3}], s{sT0} offen lds")
        a(f"buffer_load_dwordx4 v{vKA+1}, s[{SRD_A}:{SRD_A+3}], s{sT2} offen offset:1024 lds")
        a(f"global_load_dwordx2 v[14:15], v{vSH}, s[{sSH}:{sSH+1}]")
        a(f"s_cmp_lg_u32 s{sW}, 3"); a(f"s_cbranch_scc1 {d}")
        a(f"s_sub_u32 s{sT0}, s{sT0}, {56*1280}"); a(f"s_cselect_b32 s{sT0}, 0x40000000, s{sT0}"); a(f"s_sub_u32 m0, s{sCB}, 512")
        a("s_mov_b32 exec_lo, 0"); a(f"buffer_load_dwordx4 v{vKA+1}, s[{SRD_A}:{SRD_A+3}], s{sT0} offen lds"); a("s_mov_b32 exec_lo, -1")
        a.label(d)
    trace_at(0)
def h_issue():
    a(f"s_mov_b32 m0, s{sHL}")
    a(f"s_sub_u32 s{sT0}, s{sHG}, 16"); a(f"s_bitcmp1_b32 s{sW}, 0"); a(f"s_cselect_b32 s{sT0}, s{sT0}, 0x40000000")
    a(f"buffer_load_dwordx4 v{vL16}, s[{SRD_B}:{SRD_B+3}], s{sHG} offen lds")
    a(f"buffer_load_dwordx4 v{vL16}, s[{SRD_B}:{SRD_B+3}], s{sHG} offen offset:1024 lds")
    a(f"s_sub_u32 m0, s{sHL}, 16"); a("s_mov_b64 exec, 1")
    a(f"buffer_load_dwordx4 v{vL16}, s[{SRD_B}:{SRD_B+3}], s{sT0} offen lds")
    a("s_mov_b64 exec, -1")
a(f"s_setprio {O['prioK']}")
if O["ki"] >= 0: a(f"s_cmp_eq_u32 s{sROLE}, 0"); a("s_cbranch_scc1 L_c2")
kv_issue("kv")
a.label("L_c2")
a(f"s_lshr_b32 s{sT0}, s{sWV}, 2"); a(f"s_lshl_b32 s{sT0}, s{sT0}, 6"); a(f"s_add_u32 s{sT0}, s{sT0}, {FL}"); a(f"v_mov_b32 v{vFL}, s{sT0}")
a(f"v_mov_b32 v{vT2}, 0")
a(f"s_lshl_b32 s{sT0}, s{sW}, 8"); a(f"s_add_u32 s{sT0}, s{sT0}, s{sCB}"); a(f"v_lshl_add_u32 v{vT1}, v{vLANE}, 2, s{sT0}")
a(f"ds_write_b32 v{vT1}, v{vT2} offset:{UB + 8192}")
a(f"s_mul_i32 s{sT0}, s{sW}, {HOO}"); a(f"s_add_u32 s{sT0}, s{sT0}, s{sCB}"); a(f"v_lshl_add_u32 v{vT1}, v{vN}, 2, s{sT0}")
a(f"ds_write_b32 v{vT1}, v{vT2} offset:{HB}")
a(f"v_lshl_add_u32 v{vT1}, v{vN}, 2, v{vFL}"); a(f"ds_write_b32 v{vT1}, v{vT2}")
a(f"v_and_b32 v{vT0}, 1, v{vG}"); a(f"v_lshrrev_b32 v{vT1}, 1, v{vG}")
a(f"v_lshlrev_b32 v{vT2}, 2, v{vN}"); a(f"v_sub_u32 v{vT2}, v{vT2}, v{vT0}")
a(f"s_add_u32 s{sT0}, s{sCB}, 256"); a(f"v_lshl_add_u32 v{vT2}, v{vT2}, 7, s{sT0}")
a(f"s_lshl_b32 s{sT1}, s{sW}, 1"); a(f"v_or_b32 v{vT3}, s{sT1}, v{vT1}")
a(f"v_sub_u32 v{vRZ}, v{vN}, v{vT0}"); a(f"v_subrev_u32 v{vRM}, 1, v{vN}")
for r, src in ((vRP, vN), (vRZ, vRZ), (vRM, vRM)):
    a(f"v_xor_b32 v{r}, v{src}, v{vT3}"); a(f"v_and_b32 v{r}, 7, v{r}"); a(f"v_lshl_add_u32 v{r}, v{r}, 4, v{vT2}")
a(f"v_mul_u32_u24 v{vT3}, 136, v{vT0}"); a(f"v_add_u32 v{vRV}, v{vRP}, v{vT3}")
a(f"v_and_b32 v{vT2}, 1, v{vN}"); a(f"v_xor_b32 v{vRO}, v{vT0}, v{vT2}"); a(f"v_lshlrev_b32 v{vRO}, 4, v{vRO}")
a(f"v_lshlrev_b32 v{vT2}, 4, v{vT2}"); a(f"v_mov_b32 v{vT3}, 0xffff"); a(f"v_lshlrev_b32 v{vT2}, v{vT2}, v{vT3}")
a(f"v_lshrrev_b32 v{vT3}, 1, v{vN}"); a(f"v_lshlrev_b32 v{vT1}, 2, v{vT1}"); a(f"v_sub_u32 v{vT3}, v{vT3}, v{vT1}")
for q in range(4):
    a(f"v_cmp_eq_u32 vcc, {q}, v{vT3}"); a(f"v_cndmask_b32 v{KM+q}, 0, v{vT2}, vcc")
a(f"v_not_b32 v{vT0}, v{vLANE}")
a(f"v_bfe_u32 v{vT1}, v{vT0}, 1, 2"); a(f"v_lshlrev_b32 v{vT1}, 4, v{vT1}")
a(f"v_bfe_u32 v{vT2}, v{vT0}, 3, 1"); a(f"v_lshl_add_u32 v{vT1}, v{vT2}, 7, v{vT1}")
a(f"v_xor_b32 v{vT2}, s{sTB}, v{vT0}"); a(f"v_and_b32 v{vT2}, 1, v{vT2}"); a(f"v_lshl_add_u32 v{vT1}, v{vT2}, 6, v{vT1}")
a(f"v_lshl_add_u32 v{vT1}, v{vG}, 14, v{vT1}")
a(f"s_lshl2_add_u32 s{sT0}, s{sCS}, s{sW}"); a(f"s_lshl_b32 s{sT1}, s{sT0}, 16"); a(f"s_lshl_b32 s{sT2}, s{sTB}, 8"); a(f"s_sub_u32 s{sT1}, s{sT1}, s{sT2}")
a(f"s_add_u32 s{sT1}, s{sT1}, {UWS + 31*256}"); a(f"v_add_u32 v{vUS}, s{sT1}, v{vT1}")
a(f"s_lshl_b32 s{sT1}, s{sT0}, 10"); a(f"s_lshl2_add_u32 s{sT1}, s{sTB}, s{sT1}"); a(f"s_add_u32 s64, s{sT1}, {UF}")
a(f"s_and_b32 s{sT0}, s{sPAIR}, -8"); a(f"s_cmp_ge_u32 s{sCS}, 3"); a(f"s_cselect_b32 s{sT0}, s{sT0}, s{sTB}")
a(f"s_lshl_b32 s{sT0}, s{sT0}, 7"); a(f"s_add_u32 s65, s{sT0}, {UF}")
AB, vBB, vHW, vYS, vMW, vMR = 148, 152, 156, 157, 158, 159
CACC, CA, CB0, CB1, AD = 16, 48, 80, 112, 144
def conv_setup():
    a(f"s_and_b32 s{sT1}, s{sW}, 1"); a(f"v_add_u32 v{vHW}, s{sHL}, v{vL16}")
    a(f"s_lshl_b32 s{sT2}, s{sT1}, 8"); a(f"s_add_u32 s{sT0}, s{sHE}, s{sT2}"); a(f"s_add_u32 s{sT0}, s{sT0}, {HOO - 28}")
    a(f"v_lshrrev_b32 v{vT0}, 1, v{vN}"); a(f"v_lshl_add_u32 v{vT0}, v{vG}, 2, v{vT0}"); a(f"v_lshl_add_u32 v{vT0}, v{vT0}, 2, s{sT0}")
    a(f"v_and_b32 v{vT1}, 1, v{vN}"); a(f"v_mul_u32_u24 v{vT1}, {HOO}, v{vT1}"); a(f"v_sub_u32 v{AB}, v{vT0}, v{vT1}")
    for j in range(1, 4): a(f"v_add_u32 v{AB+j}, {1024*j}, v{AB}")
    a(f"v_lshlrev_b32 v{vT0}, 1, v{vN}"); a(f"v_sub_u32 v{vT0}, v{vG}, v{vT0}")
    a(f"s_lshl_b32 s{sT2}, s{sT1}, 4"); a(f"s_add_u32 s{sT2}, s{sT2}, 30"); a(f"v_add_u32 v{vT0}, s{sT2}, v{vT0}")
    a(f"s_lshr_b32 s{sT2}, s{sW}, 1"); a(f"s_add_u32 s{sT0}, s{sCB}, {UB}")
    for j in range(2):
        if j: a(f"v_add_u32 v{vT0}, 4, v{vT0}")
        a(f"v_and_b32 v{vT1}, 3, v{vT0}"); a(f"v_lshl_add_u32 v{vT1}, v{vT1}, 4, s{sT0}")
        a(f"v_lshrrev_b32 v{vT2}, 2, v{vT0}"); a(f"v_lshl_add_u32 v{vT1}, v{vT2}, 7, v{vT1}")
        a(f"v_bfe_u32 v{vT2}, v{vT0}, 3, 1"); a(f"v_xor_b32 v{vT2}, s{sT2}, v{vT2}"); a(f"v_lshl_add_u32 v{vBB+j}, v{vT2}, 6, v{vT1}")
        a(f"v_xor_b32 v{vBB+j+2}, 64, v{vBB+j}")
    a(f"v_and_b32 v{vT1}, 1, v{vG}"); a(f"v_lshlrev_b32 v{vT1}, 9, v{vT1}"); a(f"v_lshl_add_u32 v{vT1}, v{vN}, 5, v{vT1}")
    a(f"v_lshrrev_b32 v{vT2}, 1, v{vG}"); a(f"v_lshl_add_u32 v{vT1}, v{vT2}, 4, v{vT1}")
    a(f"s_lshl_b32 s{sT0}, s{sCH}, 12"); a(f"s_add_u32 s{sT0}, s{sT0}, {YWS}"); a(f"v_add_u32 v{vYS}, s{sT0}, v{vT1}")
    a(f"s_lshl_b32 s{sT1}, s{sCS}, 16"); a(f"s_lshr_b32 s{sT0}, s{sTB}, 3"); a(f"s_lshl_b32 s{sT0}, s{sT0}, 7"); a(f"s_add_u32 s{sT1}, s{sT1}, s{sT0}")
    a(f"s_and_b32 s{sT0}, s{sTB}, 7"); a(f"s_lshl3_add_u32 s{sT1}, s{sT0}, s{sT1}"); a(f"s_add_u32 s82, s{sT1}, {GB}")
    a(f"s_lshl_b32 s{sT0}, s{sW}, 12"); a(f"s_add_u32 s{sT0}, s{sT0}, s{sMRG}"); a(f"v_add_u32 v{vMW}, s{sT0}, v{vL16}")
    a(f"s_xor_b32 s{sT0}, s{sW}, 1"); a(f"s_lshl_b32 s{sT0}, s{sT0}, 12"); a(f"s_add_u32 s{sT0}, s{sT0}, s{sMRG}"); a(f"v_add_u32 v{vMR}, s{sT0}, v{vL16}")
    a("s_waitcnt lgkmcnt(0)")
    mk_tag()
    a(f"s_mov_b32 s{sTG2}, s{sTAG}"); a(f"s_mov_b32 s{sTG2+1}, s{sTAG}")
    ptr(sUFA, 65)
    a(f"s_bitcmp1_b32 s{sW}, 1"); a(f"s_cselect_b32 s{sT0}, 0, 16"); a(f"s_lshl_b32 s{sDV}, s{sDV}, s{sT0}"); a(f"s_and_b32 s{sDV}, s{sDV}, 0xffff0000")
    a(f"s_bitcmp1_b32 s{sW}, 0"); a(f"s_cselect_b32 s{sDV}, 0, s{sDV}")
assert (CBG + UB) % 128 == 0 and (1024 + UB) % 128 == 0 and CSZ % 128 == 0
def kv_compute():
    trace_at(2)
    KF, VR, KS, WA, PK, UQ = 24, 48, 56, 72, 80, 88
    for d in (0, -2, 1, -1, 2, 3): a(f"ds_read_b128 {v(KF+4*(d+2),4)}, v{vRP if d > 0 else vRZ if d == 0 else vRM} offset:{128*(d+2)}")
    for j in range(4): a(f"ds_read_b64 {v(VR+2*j,2)}, v{vRV} offset:{8704-256+128*j}")
    a(f"v_alignbit_b32 v14, v14, v14, v{vRO}"); a(f"v_alignbit_b32 v15, v15, v15, v{vRO}")
    for q in range(8): a(f"v_and_b32 v{WA+q}, v{14+q//4}, v{KM+q%4}")
    srd(a, SRD_A, sWS, sWS + 1, WSN)
    a("s_mov_b32 vcc_lo, 0xaaaaaaaa"); a("s_mov_b32 vcc_hi, 0xaaaaaaaa"); a(f"s_movk_i32 s{sT0}, 8192")
    a("s_waitcnt lgkmcnt(0)")
    for j in range(4):
        a(f"{MF} {v(KS+4*j,4)}, {v(WA,4)}, {v(KF+4*(j+2),4)}, 0")
        a(f"{MF} {v(KS+4*j,4)}, {v(WA+4,4)}, {v(KF+4*j,4)}, {v(KS+4*j,4)}")
        for q in range(2):
            a(f"v_lshlrev_b32 v{96+4*j+2*q}, 16, v{VR+2*j+q}"); a(f"v_and_b32 v{97+4*j+2*q}, 0xffff0000, v{VR+2*j+q}")
    for i in range(16): a(f"v_mul_f32 v{96+i}, v{KS+i}, v{96+i}")
    DP = "quad_perm:[1,0,3,2] row_mask:0xf bank_mask:0xf"
    for r in range(4):
        a(f"v_cvt_pk_bf16_f32 v{PK+2*r}, v{96+12+r}, v{96+8+r}"); a(f"v_cvt_pk_bf16_f32 v{PK+2*r+1}, v{96+4+r}, v{96+r}")
    for jp in range(2):
        for q in range(2): a(f"v_cndmask_b32_dpp v{UQ+4*jp+q}, v{PK+4*jp+q}, v{PK+4*jp+2+q}, vcc {DP}")
    a("s_not_b64 vcc, vcc")
    for jp in range(2):
        for q in range(2): a(f"v_cndmask_b32_dpp v{UQ+4*jp+2+q}, v{PK+4*jp+2+q}, v{PK+4*jp+q}, vcc {DP}")
        a(f"buffer_store_dwordx4 {v(UQ+4*jp,4)}, v{vUS}, s[{SRD_A}:{SRD_A+3}], {'s%d' % sT0 if jp else 0} offen sc1")
    trace_at(3)
def h_build():
    trace_at(6)
    a(f"v_subrev_u32 v{vT0}, 4, v{vHW}")
    for c in range(2):
        a(f"ds_read_b32 v{21+8*c}, v{vT0} offset:{1024*c}"); a(f"ds_read_b128 {v(22+8*c,4)}, v{vHW} offset:{1024*c}")
    a("s_waitcnt lgkmcnt(0)")
    a("s_mov_b64 exec, 1")
    a("v_lshlrev_b32 v26, 16, v22"); a("v_and_b32 v27, 0xffff0000, v22"); a(f"v_add_f32 v26, s{sDV}, v26"); a("v_cvt_pk_bf16_f32 v22, v26, v27")
    a(f"ds_write_b32 v{vHW}, v22")
    a("s_mov_b64 exec, -1")
    for c in range(2):
        for d in range(4): a(f"v_alignbit_b32 v{40+4*c+d}, v{22+8*c+d}, v{21+8*c+d}, 16")
        a(f"ds_write_b128 v{vHW}, {v(40+4*c,4)} offset:{HOO+1024*c}")
    a("s_waitcnt lgkmcnt(0)")
def u_poll(block):
    l = a.newlabel("Lup"); d = a.newlabel("Lud")
    a(f"s_cmp_lg_u32 s{sUI}, 0"); a(f"s_cbranch_scc1 {d}")
    if block: a(f"s_mov_b32 s{sSPIN}, 0")
    a.label(l)
    a(f"s_load_dwordx16 s[64:79], s[{sUFA}:{sUFA+1}], 0 glc"); a(f"s_load_dwordx16 s[4:19], s[{sUFA}:{sUFA+1}], 64 glc")
    a("s_waitcnt lgkmcnt(0)")
    for j in range(0, 16, 2):
        a(f"s_xor_b64 s[{64+j}:{65+j}], s[{64+j}:{65+j}], s[{sTG2}:{sTG2+1}]"); a(f"s_xor_b64 s[{4+j}:{5+j}], s[{4+j}:{5+j}], s[{sTG2}:{sTG2+1}]")
        if j: a(f"s_or_b64 s[64:65], s[64:65], s[{64+j}:{65+j}]")
        a(f"s_or_b64 s[64:65], s[64:65], s[{4+j}:{5+j}]")
    if block:
        g = a.newlabel("Lug")
        a(f"s_cbranch_scc0 {g}"); spin_tail(l); a.label(g)
    else: a(f"s_cbranch_scc1 {d}")
    a(f"s_mov_b32 s{sUI}, -1")
    trace_at(7)
    a.label(d)
def u_issue():
    d = a.newlabel("Lui")
    a(f"s_cmp_lg_u32 s{sUI}, -1"); a(f"s_cbranch_scc1 {d}")
    a(f"s_add_u32 m0, s{sCB}, {UB}"); a(f"s_lshl_b32 s{sT0}, s{sPAIR}, 13"); a(f"s_add_u32 s{sT0}, s{sT0}, {UWS}")
    for i in range(8):
        a(f"buffer_load_dwordx4 v{vL16}, s[{SRD_A}:{SRD_A+3}], s{sT0} offen offset:{1024*(i&3)} sc1 lds")
        if i == 3: a("s_add_u32 m0, m0, 4096"); a(f"s_add_u32 s{sT0}, s{sT0}, 4096")
    a(f"s_mov_b32 s{sUI}, 9")
    trace_at(8)
    a.label(d)
def rdA(m, st):
    return [("r", f"ds_read2_b32 {v(CA+4*m+2*e,2)}, v{AB+m//2} offset0:{128*(m&1)+16*st+2*e} offset1:{128*(m&1)+16*st+2*e+1}", ("A", m, st)) for e in range(2)]
def cb(st, z): return (CB1 if st & 1 else CB0) + 4 * z
def rdB(st, z): return ("r", f"ds_read_b128 {v(cb(st,z),4)}, v{vBB+st} offset:{1024*(7-z) + 256*(st>>1)}", ("B", z, st))
def pre_b():
    for z in range(7, -1, -1): a(rdB(0, z)[1])
def pre_a():
    n = 0
    for m in range(8):
        for x in rdA(m, 0):
            a(x[1]); n += 1
            if n == 12: a("s_waitcnt lgkmcnt(6)")
a("s_waitcnt lgkmcnt(0)")
a(f"s_load_dword s{sTAG}, s[{sWS}:{sWS+1}], {EPOCH}")
a(f"s_lshl_b32 s{sT0}, s{sPAIR}, 2"); a(f"s_load_dword s{sDV}, s[{sDD}:{sDD+1}], s{sT0}")
sQI, vQC, QC0 = 80, 166, 112
QK = [8, 10, 14, 160, 162, 164]
def cbar(b):
    a("s_barrier")
    if b < 10:
        d = a.newlabel("Lq")
        a(f"s_cmp_lg_u32 s{sQI}, {b}"); a(f"s_cbranch_scc1 {d}")
        for m in range(6): a(f"ds_read_b64 {v(QC0+2*m,2)}, v{vQC} offset:{2048*(m+1)}")
        a("s_waitcnt lgkmcnt(0)")
        a.label(d)
a(f"s_cmp_lg_u32 s{sROLE}, 0"); a("s_cbranch_scc1 L_cs")
a(f"s_sub_u32 s{sQI}, s{sSG}, s{sST0}"); a(f"s_cselect_b32 s{sT0}, 10, 0"); a(f"s_add_u32 s{sQI}, s{sQI}, s{sT0}")
seqtab(True, sSEQ); a(f"s_lshl_b32 s{sQI}, s{sQI}, 2"); a(f"s_lshr_b64 s[{sSEQ}:{sSEQ+1}], s[{sSEQ}:{sSEQ+1}], s{sQI}"); a(f"s_and_b32 s{sQI}, s{sSEQ}, 15")
a(f"s_mul_i32 s{sT0}, s{sQI}, 43"); a(f"s_lshr_b32 s{sT0}, s{sT0}, 7"); a(f"s_mul_i32 s{sT0}, s{sT0}, 3"); a(f"s_sub_u32 s{sT0}, s{sQI}, s{sT0}"); a(f"s_mul_i32 s{sT1}, s{sT0}, {SLOT}")
a(f"v_lshrrev_b32 v{vT0}, 1, v{vN}"); a(f"v_lshrrev_b32 v{vT1}, 1, v{vG}"); a(f"v_xor_b32 v{vT0}, v{vT0}, v{vT1}"); a(f"s_lshl_b32 s{sT0}, s{sW}, 1"); a(f"v_xor_b32 v{vT0}, s{sT0}, v{vT0}")
a(f"v_lshlrev_b32 v{vT0}, 4, v{vT0}"); a(f"v_lshl_add_u32 v{vT0}, v{vN}, 7, v{vT0}"); a(f"v_and_b32 v{vT1}, 1, v{vG}"); a(f"v_lshl_add_u32 v{vT0}, v{vT1}, 3, v{vT0}")
a(f"v_add_u32 v{vQC}, s{sT1}, v{vT0}")
cbar(0); a("s_setprio 0")
for i in range(3):
    a(f"v_add_u32 v{vT0}, {64*i}, v{vLANE}"); a(f"v_mul_u32_u24 v{vT1}, 5462, v{vT0}"); a(f"v_lshrrev_b32 v{vT1}, 16, v{vT1}")
    a(f"v_mul_u32_u24 v{vT1}, {4096-192}, v{vT1}"); a(f"v_lshl_add_u32 v{144+i}, v{vT0}, 4, v{vT1}")
a(f"s_xor_b32 s{sT0}, s{sW}, 1"); a(f"s_lshl_b32 s{sT0}, s{sT0}, 12"); a(f"s_add_u32 s{sT0}, s{sT0}, {MRG}")
a(f"v_lshrrev_b32 v{vT0}, 2, v{vLANE}"); a(f"v_mul_u32_u24 v{vT0}, 192, v{vT0}"); a(f"v_and_b32 v{vT1}, 3, v{vLANE}"); a(f"v_lshl_add_u32 v{vT0}, v{vT1}, 3, v{vT0}"); a(f"v_add_u32 v147, s{sT0}, v{vT0}")
a.label("L_cs")
conv_setup()
a(f"s_setprio {O['prioK']}")
a(f"s_cmp_lg_u32 s{sROLE}, 0"); a("s_cbranch_scc1 L_akv")
KI, KB, US = O["ki"], O["kb"], O["us"]
for b in range(KB):
    if b: cbar(b)
    parts = ("k" if b == KI else "") + ("v" if b == O["vi"] else "")
    if parts:
        if O["kd"]: a(f"s_sleep {O['kd']}")
        kv_issue(parts)
        if O["hi"] == 0:
            a(f"s_mov_b64 s[{SRD_B}:{SRD_B+1}], s[{sSSM}:{sSSM+1}]"); h_issue()
if O["hi"] == 0: a("s_waitcnt vmcnt(3)"); a("s_branch L_kvw2")
else: a("s_branch L_kvw")
a.label("L_akv")
a(f"s_mov_b32 s{sQI}, -1"); a(f"v_mov_b32 v{vQC}, 0"); a("v_mov_b32 v144, 0"); a("v_mov_b32 v145, 0"); a("v_mov_b32 v146, 0")
if O["uft"]: a(f"s_load_dword s66, s[{sWS}:{sWS+1}], s65 glc")
if O["tlb"]:
    a(f"s_cmp_lg_u32 s{sWV}, 1"); a("s_cbranch_scc1 L_kva")
    a(f"v_lshlrev_b32 v{vT0}, 21, v{vLANE}"); a("s_mov_b64 exec, 0x3e")
    a(f"global_load_dword v160, v{vT0}, s[{sWS}:{sWS+1}]"); a("s_mov_b64 exec, 3")
    a(f"global_load_dword v161, v{vT0}, s[{sOUT}:{sOUT+1}]"); a("s_mov_b64 exec, 1")
    a(f"global_load_dword v162, v{vT0}, s[{sWO}:{sWO+1}]"); a(f"global_load_dword v163, v{vT0}, s[{sDBG}:{sDBG+1}] offset:128"); a("s_mov_b64 exec, -1")
    a(f"s_waitcnt vmcnt(4)"); a("s_branch L_kvw2")
a.label("L_kva")
a.label("L_kvw")
a("s_waitcnt vmcnt(0)")
a.label("L_kvw2")
trace_at(1)
a(f"s_mov_b64 s[{SRD_B}:{SRD_B+1}], s[{sSSM}:{sSSM+1}]")
cbar(KB)
kv_compute()
a(f"s_cmp_lg_u32 s{sROLE}, 0"); a("s_cbranch_scc1 L_asig")
a("s_setprio 0")
a(f"s_mov_b32 s{sUI}, s{sW}")
for b in range(KB + 1, 10):
    cbar(b)
    if b == US:
        trace_at(4); a("s_waitcnt vmcnt(0)")
        a(f"s_atomic_swap s{sTAG}, s[{sWS}:{sWS+1}], s64")
        trace()
    if b == O["hi"]: h_issue()
    if O["ub"] <= b <= O["ui"]: u_poll(False)
    if b == O["ui"]: u_issue()
    if PRE and b == US + 1: wo_setup(8, 84)
    if O["cwo"] and b == US + 1: wo_setup(16, 84)
    if PRE and b == 8:
        for w in range(1, 4):
            a(f"s_cmp_lg_u32 s{sW}, {w}"); a(f"s_cbranch_scc1 L_wo{w}")
            wo_blocks(PRE[w-1::3], 8, 84)
            a.label(f"L_wo{w}")
sB10 = 81
a(f"s_setprio {O['prioH']}")
for m in range(6): a(f"v_mov_b32 v{QK[m]}, v{QC0+2*m}"); a(f"v_mov_b32 v{QK[m]+1}, v{QC0+2*m+1}")
a("s_waitcnt vmcnt(0)")
a(f"s_cmp_lg_u32 s{sUI}, 9"); a("s_cbranch_scc1 L_nul"); lds_set(F_UL, 1); a(f"s_mov_b32 s{sUI}, 1")
a.label("L_nul")
h_build()
def cpre():
    a(f"ds_read_b32 v{vT1}, v{vFL} offset:{F_UL}")
    pre_a()
    a(f"v_readfirstlane_b32 s{sB10}, v{vT1}")
    a("s_waitcnt lgkmcnt(6)")
    pre_b()
if O["cpre"]:
    lds_add(F_HB); lds_wait(F_HB, 4); cpre()
a(f"s_setprio {O['prioC']}")
a("s_barrier")
trace_at(9)
CWB = POST[:O["cwo"]]
if CWB:
    a(f"s_setprio {O['prioW']}")
    for w in range(4):
        if w < 3: a(f"s_cmp_lg_u32 s{sW}, {w}"); a(f"s_cbranch_scc1 L_cw{w+1}")
        wo_blocks(CWB[w::4], 16, 84)
        if w < 3: a("s_branch L_cwd"); a.label(f"L_cw{w+1}")
    a.label("L_cwd")
    a(f"s_setprio {O['prioC']}")
    POST = POST[O["cwo"]:]
if O["csl"]: a(f"s_sleep {O['csl']}")
if not O["cpre"]: cpre()
a(f"s_cmp_lg_u32 s{sB10}, 0"); a("s_cbranch_scc1 L_conv2")
u_poll(True); u_issue()
a(f"s_cmp_lg_u32 s{sUI}, 9"); a("s_cbranch_scc1 L_uwait")
a("s_waitcnt vmcnt(0)")
lds_set(F_UL, 1)
a.label("L_uwait")
lds_wait(F_UL, 1)
a("s_branch L_conv")
a.label("L_asig")
a(f"v_lshl_add_u32 v{vT0}, v{vLANE}, 7, s64"); a(f"v_mov_b32 v{vT1}, s{sTAG}")
a(f"s_cmp_ge_u32 s{sCS}, 3"); a(f"s_cselect_b32 s{sT1}, 1, 0xff")
a("s_barrier"); h_issue(); a("s_waitcnt vmcnt(3)")
trace_at(4)
a("s_barrier")
a(f"s_cmp_ge_u32 s{sWV}, 4"); a("s_cbranch_scc1 L_ansig")
a("s_mov_b32 exec_hi, 0"); a(f"s_mov_b32 exec_lo, s{sT1}"); a(f"global_atomic_swap v{vT0}, v{vT1}, s[{sWS}:{sWS+1}] sc1"); a("s_mov_b64 exec, -1")
a.label("L_ansig")
if STAMPS_ON: a("s_waitcnt lgkmcnt(0)")
trace_at(5)
a("s_waitcnt vmcnt(0)")
h_build()
a(f"s_mov_b32 s{sUI}, s{sWV}")
u_poll(True)
a(f"s_lshl_b32 s{sT1}, s{sW}, 11"); a(f"s_add_u32 s{sT2}, s{sCB}, s{sT1}"); a(f"s_add_u32 m0, s{sT2}, {UB}")
a(f"s_lshl_b32 s{sT0}, s{sPAIR}, 13"); a(f"s_add_u32 s{sT0}, s{sT0}, s{sT1}"); a(f"s_add_u32 s{sT0}, s{sT0}, {UWS}")
a("s_barrier")
for i in range(2): a(f"buffer_load_dwordx4 v{vL16}, s[{SRD_A}:{SRD_A+3}], s{sT0} offen offset:{1024*i} sc1 lds")
trace_at(9)
pre_a()
a("s_waitcnt vmcnt(0) lgkmcnt(0)")
a("s_barrier")
a(f"s_cmp_lt_u32 s{sWV}, 8"); a("s_cbranch_scc1 L_conv")
if O["ht"]:
    a(f"s_lshl2_add_u32 s{sT0}, s{sTB}, s{sW}"); a(f"s_mul_i32 s{sT0}, s{sT0}, {112*128}"); a(f"s_add_u32 s{sT0}, s{sT0}, {192*4096}")
    a(f"v_lshlrev_b32 v{vT0}, 7, v{vLANE}"); a(f"s_add_u32 s{sT1}, s{sT0}, 8192")
    a(f"buffer_load_dword v160, v{vT0}, s[{SRD_B}:{SRD_B+3}], s{sT0} offen"); a("s_mov_b32 exec_hi, 0xffff")
    a(f"buffer_load_dword v160, v{vT0}, s[{SRD_B}:{SRD_B+3}], s{sT1} offen"); a("s_mov_b32 exec_hi, -1")
if O["wot"]:
    a(f"s_bfe_u32 s{sT0}, s2, {3 | (2 << 16)}"); a(f"s_lshl2_add_u32 s{sT0}, s{sT0}, s{sW}"); a(f"s_mul_i32 s{sT0}, s{sT0}, {40*1280}")
    a(f"s_mul_i32 s{sT1}, s{sSG}, 640"); a(f"s_add_u32 s{sT0}, s{sT0}, s{sT1}")
    srd(a, SRD_B, sWO, sWO + 1, 640 * 1280)
    a(f"v_mul_u32_u24 v{vT1}, 13108, v{vLANE}"); a(f"v_lshrrev_b32 v{vT1}, 16, v{vT1}")
    a(f"v_mul_u32_u24 v{vT1}, 640, v{vT1}"); a(f"v_lshl_add_u32 v{vT1}, v{vLANE}, 7, v{vT1}")
    a("s_mov_b32 exec_hi, 0x3ffff")
    for k in range(4):
        a(f"buffer_load_dword v160, v{vT1}, s[{SRD_B}:{SRD_B+3}], s{sT0} offen")
        a(f"s_add_u32 s{sT0}, s{sT0}, {10*1280}")
    a("s_mov_b64 exec, -1")
a.label("L_conv")
a(f"s_setprio {O['prioC']}")
pre_b()
a.label("L_conv2")
trace_at(10)
def cmf(t, m, st): return ("m", f"{MF} {v(CACC+4*t,4)}, {v(CA+4*m,4)}, {v(cb(st,t-m),4)}, {v(CACC+4*t,4) if st or m else 0}", [("B", t - m, st)] + ([("A", m, st)] if st else []))
seq = [("r", "", rdB(0, z)[2]) for z in range(7, -1, -1)]
for st in range(3):
    pend = [rdB(st + 1, z) for z in range(7, -1, -1)]
    if st == 2: pend.append(("r", f"ds_read_b32 v{vT0}, v{vFL} offset:{F_EA + 64}", ("F",)))
    for m in range(8):
        for k_, t in enumerate(range(7, m - 1, -1)):
            seq.append(cmf(t, m, st))
            if pend and (k_ % 2 == 1 or m >= 4): seq.append(pend.pop(0))
        pend = rdA(m, st + 1) + pend
    seq += pend
if CWB:
    k = [i for i, x in enumerate(seq) if x[0] == "m"][O["cwa"]]
    seq.insert(k, ("r", f"v_mov_b32 v{vT0}, 1\ns_waitcnt vmcnt(0)\ns_mov_b64 exec, 1\nds_add_u32 v{vFL}, v{vT0} offset:{F_WO + 64}\ns_mov_b64 exec, -1", ("WO",)))
tailr = [x for x in seq if x[0] == "r"][-14:]
seq.insert(len(seq) - 30, T(f"s_lshl_b32 s{sT0}, s{sW}, 2\nv_add_u32 v{vT1}, s{sT0}, v{vFL}"))
seq.insert(len(seq) - 24, T(f"v_xor_b32 v{vT2}, 4, v{vT1}\ns_and_b32 s{sT0}, s{sSGL}, 3"))
seq.insert(len(seq) - 18, T(f"s_cselect_b32 s{sT0}, 4, 6\ns_cmp_eq_u32 s{sROLE}, 0"))
seq.insert(len(seq) - 12, T(f"s_cselect_b32 s{sB10}, s{sT0}, 0\ns_bitcmp1_b32 s{sW}, 0"))
emit_seq(seq, False, 0)
a("s_cbranch_scc1 L_mrg1")
for h in range(2):
    if h: a.label("L_mrg1")
    keep, send = ([0, 1, 6, 7], [2, 3, 4, 5])[::1 - 2 * h]
    seq = [("r", "", ("old",))] + [("r", "", x[2]) for x in tailr]
    def fix(x):
        ks = [k for k in x[2] if k in [y[2] for y in tailr]]
        return (x[0], x[1], ks or [("old",)])
    for m in range(8): seq += [fix(cmf(t, m, 3)) for t in send[::-1] if t >= m]
    def chk(h=h):
        a(f"v_readfirstlane_b32 s{sT3}, v{vT0}"); a(f"s_cmp_lt_u32 s{sT3}, s{sB10}"); a(f"s_cbranch_scc1 L_mslow{h}"); a.label(f"L_mgo{h}")
    seq += [fix(("m", "", [("F",)])), ("t", chk)]
    wr = [("r", f"ds_write_b128 v{vMW}, {v(CACC+4*t,4)} offset:{1024*i}", ("S",)) for i, t in enumerate(send)] + [("r", f"ds_write_b32 v{vT1}, v{vT1} offset:{F_MG+4}", ("S",))]
    n = 0
    for m in range(8):
        for t in keep[::-1]:
            if t >= m:
                seq.append(fix(cmf(t, m, 3))); n += 1
                if wr and n >= 3: seq.append(wr.pop(0))
    emit_seq(seq, False, 0)
    trace_at(11)
    a("s_setprio 3")
    a.label(f"L_mb{h}")
    a(f"ds_read_b32 v{vT0}, v{vT2} offset:{F_MG+4}")
    for i in range(4): a(f"ds_read_b128 {v(CB0+4*i,4)}, v{vMR} offset:{1024*i}")
    a("s_waitcnt lgkmcnt(4)")
    a(f"v_readfirstlane_b32 s{sT3}, v{vT0}"); a(f"s_cmp_eq_u32 s{sT3}, 0"); a(f"s_cbranch_scc1 L_mw{h}")
    for pr in range(2):
        k0 = CACC + 4 * keep[2 * pr]
        a(f"s_waitcnt lgkmcnt({2-2*pr})")
        for r in range(8): a(f"v_add_f32 v{k0+r}, v{k0+r}, v{CB0+8*pr+r}")
        b = CB0 + 16 + 4 * pr
        pack(b, k0); pack(b + 2, k0 + 4)
        a(f"v_permlane16_swap_b32 v{b}, v{b+2}"); a(f"v_permlane16_swap_b32 v{b+1}, v{b+3}")
        a(f"buffer_store_dwordx4 {v(b,4)}, v{vYS}, s[{SRD_A}:{SRD_A+3}], 0 offen offset:{512*keep[2*pr]} sc1")
    a("s_branch L_mrgd")
    a.label(f"L_mw{h}")
    lds_wait(F_MG + 4, 1, vaddr=vT2)
    a(f"s_branch L_mb{h}")
    a.label(f"L_mslow{h}")
    lds_wait(F_EA + 64, f"s{sB10}")
    a(f"s_branch L_mgo{h}")
a.label("L_mrgd")
trace_at(12)
a(f"s_cmp_lg_u32 s{sROLE}, 0"); a("s_cbranch_scc1 L_nogq")
a(f"s_setprio {O['prioQ']}")
a(f"ds_read_b32 v{vT0}, v{vFL} offset:{F_QG + 64}")
a(f"v_lshlrev_b32 v20, 2, v{vN}"); a(f"v_add_u32 v20, {GTB}, v20")
a.label("L_gqr")
for m in range(0, 6, 2): a(f"ds_read2_b32 {v(32+m,2)}, v20 offset0:{16*m} offset1:{16*m+16}")
for m in range(6):
    for q in range(2):
        a(f"v_lshlrev_b32 v{40+4*m+2*q}, 16, v{QK[m]+q}"); a(f"v_and_b32 v{41+4*m+2*q}, 0xffff0000, v{QK[m]+q}")
a("s_waitcnt lgkmcnt(0)")
a(f"v_readfirstlane_b32 s67, v{vT0}")
for m in range(6):
    for r in range(4): a(f"v_mul_f32 v{40+4*m+r}, v{32+m}, v{40+4*m+r}")
a("s_cmp_eq_u32 s67, 2"); a("s_cbranch_scc1 L_gqd")
a(f"s_lshl_b32 s{sT0}, s{sW}, 10"); a(f"s_add_u32 s{sT0}, s{sT0}, {GQA}"); a(f"v_add_u32 v21, s{sT0}, v{vL16}")
a(f"s_lshr_b32 s{sT0}, s{sW}, 1"); a(f"s_lshl_b32 s{sT0}, s{sT0}, 2"); a(f"v_add_u32 v22, s{sT0}, v{vFL}")
gblock(sT0, sSG, sRB, 0); a(f"s_lshl_b32 s{sT1}, s{sW}, 7"); a(f"s_add_u32 s{sT0}, s{sT0}, s{sT1}"); ptr(sUFA, sT0)
a(f"s_xor_b32 s{sT0}, s{sW}, 1"); a(f"s_lshl_b32 s{sT0}, s{sT0}, 12"); a(f"s_add_u32 m0, s{sT0}, {MRG}")
a(f"s_lshl2_add_u32 s66, s{sSG}, s{sW}"); a("s_lshl_b32 s66, s66, 16"); a(f"s_mul_i32 s{sT0}, s{sRB}, 192"); a(f"s_add_u32 s66, s66, s{sT0}"); a(f"s_add_u32 s66, s66, {YWS}")
a("s_setprio 3")
trace_at(14)
a.label("L_nogq")
a(f"v_lshl_add_u32 v{vT1}, v{vLANE}, 11, s82"); a(f"v_mov_b32 v{vT2}, s{sTAG}")
if not O["nd"] & 2: a("s_waitcnt vmcnt(0)")
lds_add_rtn(F_YD + 8, sT2)
a(f"s_cmp_lg_u32 s{sT2}, 3"); a("s_cbranch_scc1 L_ynosig")
if O["ssig"] & 2:
    for n in range(22): a(f"s_atomic_swap s{sTAG}, s[{sWS}:{sWS+1}], s82 offset:{n << 11}")
else:
    a("s_mov_b64 exec, 0x3fffff")
    a(f"global_atomic_swap v{vT1}, v{vT2}, s[{sWS}:{sWS+1}] sc1")
    a("s_mov_b64 exec, -1")
a.label("L_ynosig")
trace_at(13)
a(f"s_and_b32 s{sT0}, s{sTB}, 7"); a(f"s_or_b32 s{sT0}, s{sT0}, s{sW}"); a("s_cbranch_scc1 L_noep")
epoch_count()
a.label("L_noep")
a(f"s_cmp_lg_u32 s{sROLE}, 0"); a("s_cbranch_scc1 L_cexit")
poll8("L_yp", sUFA, 0, 8, 16)
for i in range(3):
    a(f"buffer_load_dwordx4 v{144+i}, s[{SRD_A}:{SRD_A+3}], s66 offen sc1 lds")
    if i < 2: a("s_add_u32 m0, m0, 1024")
trace_at(15)
lds_wait(F_YD + 8, 4)
a("s_cmp_lg_u32 s67, 0"); a("s_cbranch_scc1 L_gqd")
lds_wait(F_QG + 64, 1, sleep=1)
a(f"v_mov_b32 v{vT0}, 2"); a("s_branch L_gqr")
a.label("L_gqd")
a(f"v_mov_b32 v{vT0}, 1")
a("s_waitcnt vmcnt(0)")
for m in range(6): a(f"ds_read_b64_tr_b16 {v(64+2*m,2)}, v147 offset:{32*m}")
trace_at(16)
for m in range(6):
    a(f"s_waitcnt lgkmcnt(5)")
    for q in range(2):
        a(f"v_lshlrev_b32 v{80+4*m+2*q}, 16, v{64+2*m+q}"); a(f"v_and_b32 v{81+4*m+2*q}, 0xffff0000, v{64+2*m+q}")
    for q in range(4): a(f"v_mul_f32 v{40+4*m+q}, v{40+4*m+q}, v{80+4*m+q}")
    a(f"ds_write_b128 v21, {v(40+4*m,4)} offset:{4096*m}")
a("s_mov_b64 exec, 1"); a(f"ds_add_u32 v22, v{vT0} offset:{F_YL + 64}")
a.label("L_cexit")
if STAMPS_ON: a("s_waitcnt lgkmcnt(0)")
finish()
a.label("L_idle")
if O["ft"]:
    FTF = ["sc0 sc1", "sc1", "nt"][O["ft"] - 1]
    a(f"s_lshl3_add_u32 s{sT0}, s{sT1}, s{sWV}"); a(f"s_sub_u32 s{sT0}, s{sT0}, {32*8 + 4}")
    a(f"v_lshlrev_b32 v{vT0}, 7, v{vLANE}"); a(f"v_lshlrev_b32 v{vT1}, 10, v{vLANE}")
    a("s_waitcnt lgkmcnt(0)")
    srd(a, 44, sWS, sWS + 1, GB + 10 * 65536)
    a(f"s_cmp_lg_u32 s{sT0}, 31"); a("s_cbranch_scc1 L_idl2")
    a(f"s_mov_b32 s{sT2}, {UF + 96*128}"); a("s_mov_b64 exec, 0xfffffff"); a(f"buffer_load_dword v8, v{vT1}, s[44:47], s{sT2} offen {FTF}")
    a.label("L_idl2")
    a("s_mov_b32 exec_lo, 0x551f551f"); a("s_mov_b32 exec_hi, 0x551f551f")
    for k in range(2):
        a(f"s_mul_i32 s{sT2}, s{sT0}, 43"); a(f"s_lshr_b32 s{sT2}, s{sT2}, 8"); a(f"s_lshl1_add_u32 s{sT2}, s{sT2}, s{sT0}"); a(f"s_lshl_b32 s{sT2}, s{sT2}, 13"); a(f"s_add_u32 s{sT2}, s{sT2}, {GB}")
        a(f"buffer_load_dword v{9+k}, v{vT0}, s[44:47], s{sT2} offen {FTF}")
        a(f"s_add_u32 s{sT0}, s{sT0}, 32")
a("s_branch L_cexit")
a.label("L_hg")
a(f"v_mov_b32 v{vFL}, {FLG}")
a(f"s_mov_b32 s{sPH}, 0")
a(f"s_cmp_ge_u32 s{sWV}, 4"); a("s_cbranch_scc1 L_ps")
vHX, vHG = 12, 14
SRD_O, SRD_S = 40, 44
if O["xt"]:
    a(f"v_mul_u32_u24 v{vT0}, 1280, v{vLANE}"); a(f"s_mul_i32 s{sT0}, s{sRB}, {96*1280}"); a(f"s_lshl_b32 s{sT1}, s{sSG}, 7"); a(f"s_add_u32 s{sT0}, s{sT0}, s{sT1}")
    a(f"s_mul_i32 s{sT2}, s{sRB}, {88*1280}"); a(f"s_add_u32 s{sT2}, s{sT2}, s{sT1}"); a(f"v_add_u32 v{vT1}, {64*1280}, v{vT0}")
    a("s_waitcnt lgkmcnt(0)")
    srd(a, SRD_O, sX, sX + 1, 2048 * 1280); srd(a, SRD_S, sWQ, sWQ + 1, 640 * 3840)
    if O["xtd"]: a(f"s_sleep {O['xtd']}")
    a("s_setprio 3")
    a(f"buffer_load_dword v30, v{vT0}, s[{SRD_S}:{SRD_S+3}], s{sT2} offen")
    a(f"buffer_load_dword v31, v{vT0}, s[{SRD_O}:{SRD_O+3}], s{sT0} offen")
    a("s_mov_b64 exec, 0xffffff"); a(f"buffer_load_dword v32, v{vT1}, s[{SRD_S}:{SRD_S+3}], s{sT2} offen")
    a("s_mov_b32 exec_lo, -1"); a(f"buffer_load_dword v33, v{vT1}, s[{SRD_O}:{SRD_O+3}], s{sT0} offen"); a("s_mov_b32 exec_hi, -1")
    a("s_setprio 0")
a(f"v_mov_b32 v{vT2}, 0"); a(f"v_and_b32 v{vT1}, 31, v{vLANE}"); a(f"v_lshl_add_u32 v{vT1}, v{vT1}, 2, v{vFL}"); a(f"ds_write_b32 v{vT1}, v{vT2}")
if O["xz"]: a(f"ds_write_b32 v{vFL}, v{vFL} offset:{F_XL}")
a(f"v_lshrrev_b32 v{vT1}, 1, v{vN}"); a(f"v_xor_b32 v{vT1}, v{vT1}, v{vG}"); a(f"v_lshlrev_b32 v{vT1}, 4, v{vT1}"); a(f"v_lshl_add_u32 v{vT1}, v{vN}, 7, v{vT1}")
a(f"s_add_u32 s{sT0}, s{sSG}, 1"); a(f"s_min_u32 s{sT0}, s{sT0}, 6"); a(f"s_lshl_b32 s{sT0}, s{sT0}, 11"); a(f"v_add_u32 v15, s{sT0}, v{vT1}")
a(f"v_lshlrev_b32 v16, 4, v{vG}"); a(f"v_add_u32 v16, {GW}, v16")
for r in range(4): a(f"v_mov_b32 v{20+r}, 0")
a(f"v_lshlrev_b32 v17, 4, v{vLANE}")
a("s_waitcnt lgkmcnt(0)")
srd(a, SRD_O, sGW, sGW + 1, 1280)
a(f"s_mov_b32 m0, {GW}")
a(f"buffer_load_dwordx4 v17, s[{SRD_O}:{SRD_O+3}], 0 offen lds")
a("s_mov_b64 exec, 0xffff"); a(f"buffer_load_dwordx4 v17, s[{SRD_O}:{SRD_O+3}], 0 offen offset:1024 lds"); a("s_mov_b64 exec, -1")
wo_setup(8, SRD_O)
srd(a, SRD_S, sWS, sWS + 1, WSN)
a(f"s_load_dword s{sTAG}, s[{sWS}:{sWS+1}], {EPOCH}")
a("s_mov_b32 s51, 0"); a("s_mov_b32 s52, 0"); seqtab(False, sSEQ); next_stage(53); a("s_lshl_b32 s53, s53, 7")
a("s_barrier")
a("s_waitcnt vmcnt(0)")
a.label("L_hl")
a(f"s_cmp_gt_u32 s{sSG}, 5"); a("s_cbranch_scc1 L_hng")
a(f"v_add_u32 v{vHX}, s52, v15"); a(f"v_add_u32 v{vHG}, s53, v16"); a(f"v_xor_b32 v{vHX+1}, 64, v{vHX}")
for ks in range(2):
    a(f"ds_read_b128 {v(24+4*ks,4)}, v{vHX+ks}"); a(f"ds_read_b128 {v(32+4*ks,4)}, v{vHG} offset:{64*ks}")
a("s_waitcnt lgkmcnt(0)")
for ks in range(2): a(f"{MF} v[20:23], {v(32+4*ks,4)}, {v(24+4*ks,4)}, v[20:23]")
a.label("L_hng")
a("s_waitcnt lgkmcnt(0)")
a(f"s_add_u32 s52, s52, {SLOT}"); a(f"s_cmp_eq_u32 s52, {3*SLOT}"); a("s_cselect_b32 s52, 0, s52")
next_stage(53); a("s_lshl_b32 s53, s53, 7")
if O["gwt"]:
    a(f"s_cmp_lg_u32 s51, {O['gwt']}"); a("s_cbranch_scc1 L_hnw")
    a(f"s_lshr_b32 s{sT0}, s2, 3"); a(f"s_mul_i32 s{sT0}, s{sT0}, {(26 if O['map'] else 24)*1280}"); a(f"s_and_b32 s{sT1}, s2, 1"); a(f"s_mul_i32 s{sT1}, s{sT1}, 640"); a(f"s_add_u32 s{sT0}, s{sT0}, s{sT1}")
    a(f"v_mul_u32_u24 v{vT1}, 13108, v{vLANE}"); a(f"v_lshrrev_b32 v{vT1}, 16, v{vT1}")
    a(f"v_mul_u32_u24 v{vT1}, 640, v{vT1}"); a(f"v_lshl_add_u32 v{vT1}, v{vLANE}, 7, v{vT1}")
    a(f"s_add_u32 s{sT1}, s{sT0}, {12*1280}"); a("s_mov_b32 exec_hi, 0xfffffff")
    a(f"buffer_load_dword v40, v{vT1}, s[{SRD_O}:{SRD_O+3}], s{sT0} offen"); a(f"buffer_load_dword v41, v{vT1}, s[{SRD_O}:{SRD_O+3}], s{sT1} offen")
    if O["map"]:
        a(f"s_add_u32 s{sT1}, s{sT1}, {12*1280}"); a("s_mov_b64 exec, 0x3ff"); a(f"buffer_load_dword v42, v{vT1}, s[{SRD_O}:{SRD_O+3}], s{sT1} offen")
    a("s_mov_b64 exec, -1")
    a.label("L_hnw")
a("s_add_u32 s51, s51, 1"); a("s_cmp_ge_u32 s51, 10"); a("s_cbranch_scc1 L_hld")
a("s_barrier")
a("s_branch L_hl")
a.label("L_hld")
mk_tag()
a(f"v_mov_b32 v24, s{sTAG}")
a(f"s_mul_i32 s54, s{sRB}, {6*128}"); a(f"s_add_u32 s54, s54, {GT}")
a(f"v_lshlrev_b32 v26, 3, v{vLANE}")
a(f"s_cmp_gt_u32 s{sSG}, 5"); a("s_cbranch_scc1 L_hgd")
a("v_cvt_pk_bf16_f32 v25, v20, v20"); a("v_and_b32 v25, 0xffff0000, v25"); a("v_mul_f32 v25, 0xbfb8aa3b, v25"); a("v_exp_f32 v25, v25")
a("v_add_f32 v25, 1.0, v25"); a("v_rcp_f32 v25, v25"); a("v_cvt_pk_bf16_f32 v25, v25, v25"); a("v_and_b32 v25, 0xffff0000, v25")
a(f"s_lshl_b32 s{sT0}, s{sSG}, 7"); a(f"s_add_u32 s{sT0}, s{sT0}, s54")
a("s_mov_b64 exec, 0xffff"); a(f"buffer_store_dwordx2 v[24:25], v26, s[{SRD_S}:{SRD_S+3}], s{sT0} offen sc1"); a("s_mov_b64 exec, -1")
a.label("L_hgd")
a(f"s_setprio {O['prioW']}")
trace()
a("s_barrier")
S0B = POST[1:2*O["s0w"]:2]
wo_blocks([k for k in POST if k not in S0B], 8, SRD_O)
a(f"v_lshlrev_b32 v27, 2, v{vLANE}"); a(f"v_add_u32 v27, {GTB}, v27")
trace()
a("s_waitcnt vmcnt(0)")
lds_add(F_WO)
if STAMPS_ON: a("s_waitcnt lgkmcnt(0)")
trace()
a(f"s_mov_b32 s{sSPIN}, 0")
a(f"v_mov_b32 v30, s{sTAG}")
a.label("L_gp")
a(f"buffer_load_dwordx2 v[28:29], v26, s[{SRD_S}:{SRD_S+3}], s54 offen sc1")
a("s_mov_b32 exec_hi, 0"); a(f"buffer_load_dwordx2 v[30:31], v26, s[{SRD_S}:{SRD_S+3}], s54 offen offset:512 sc1"); a("s_mov_b32 exec_hi, -1")
a("s_waitcnt vmcnt(0)")
a(f"v_cmp_ne_u32 vcc, s{sTAG}, v28"); a(f"v_cmp_ne_u32 s[56:57], s{sTAG}, v30"); a("s_or_b64 vcc, vcc, s[56:57]"); a("s_cbranch_scc0 L_gpd")
a("s_sleep 8")
spin_tail("L_gp")
a.label("L_gpd")
a("ds_write_b32 v27, v29"); a("s_mov_b32 exec_hi, 0"); a("ds_write_b32 v27, v31 offset:256"); a("s_mov_b32 exec_hi, -1")
lds_set(F_QG, 1)
trace()
finish()

a.label("L_s0")
mk_tag()
srd(a, SRD_S, sWS, sWS + 1, WSN)
wo_setup(8, SRD_O)
a(f"v_lshlrev_b32 v17, 4, v{vLANE}")
a("s_waitcnt vmcnt(0)"); trace(); a("s_barrier")
gblock(sT0, sSG, sRB, 512); ptr(48, sT0)
a(f"s_lshl_b32 s52, s{sSG}, 5"); a(f"s_add_u32 s52, s52, s{sRB}"); a(f"s_mul_i32 s52, s52, {QT}"); a(f"s_add_u32 s52, s52, {XWS - 32*QT}")
a("s_setprio 3")
a("s_barrier")
wo_blocks(S0B, 8, SRD_O)
a(f"s_cmp_eq_u32 s{sSGL}, 0"); a("s_cbranch_scc1 L_s0n")
trace()
poll8("L_xp", 48, 0, 1, 2)
trace()
a(f"s_mov_b32 m0, {QA}")
for i in range(10):
    a(f"buffer_load_dwordx4 v17, s[{SRD_S}:{SRD_S+3}], s52 offen offset:{1024*(i&3)} sc1 lds")
    if i & 3 == 3: a("s_add_u32 m0, m0, 4096"); a("s_add_u32 s52, s52, 4096")
if O["xz"]:
    a(f"s_mov_b32 m0, {FLG + F_XL}"); a("s_mov_b32 s52, 0x40000000"); a("s_mov_b64 exec, 1")
    a(f"buffer_load_dword v17, s[{SRD_S}:{SRD_S+3}], s52 offen lds"); a("s_mov_b64 exec, -1")
a.label("L_s0n")
a("s_waitcnt vmcnt(0)")
if not O["xz"]: lds_set(F_XL, 1)
lds_add(F_WO)
if STAMPS_ON: a("s_waitcnt lgkmcnt(0)")
trace_at(13)
finish()

BO, BP, MK, vQK, vQR, vVM, vVR, vOM, vOX, vOF, vTG = 146, 150, 154, 158, 159, 160, 161, 162, 163, 164, 165
sP, sMH, sLATE, sPOS, sKD, sVD, sSC, sBF, sOB, sSND = 60, 61, 62, 63, 64, 65, 66, 67, 68, 69
SRD_P = 44
a.label("L_ps")
a(f"s_cmp_ge_u32 s{sWV}, 4"); a(f"s_cselect_b32 s{sT0}, -4, 3"); a(f"s_add_u32 s{sP}, s{sWV}, s{sT0}")
a(f"s_and_b32 s{sMH}, s{sP}, 1")
a(f"s_and_b32 s{sT0}, s{sSGL}, 3"); a(f"s_cselect_b32 s{sT0}, 4, 6"); a(f"s_cmp_ge_u32 s{sP}, s{sT0}"); a(f"s_cselect_b32 s{sLATE}, 1, 0")
a(f"v_mov_b32 v{vT3}, {hex(NEG)}"); a(f"v_lshlrev_b32 v{vT0}, 2, v{vG}"); a(f"v_sub_u32 v{vT0}, v{vN}, v{vT0}")
for r in range(4):
    a(f"v_subrev_u32 v{vT1}, {r}, v{vT0}"); a(f"v_and_b32 v{vT1}, 0x80000001, v{vT1}")
    a(f"v_cmp_eq_u32 vcc, 0, v{vT1}"); a(f"v_cndmask_b32 v{BO+r}, v{vT3}, 0, vcc")
    a(f"v_cmp_eq_u32 vcc, 0x80000000, v{vT1}"); a(f"v_cndmask_b32 v{BP+r}, v{vT3}, 0, vcc")
a(f"v_and_b32 v{vT1}, 1, v{vN}"); a(f"v_lshlrev_b32 v{vT2}, 4, v{vT1}"); a(f"v_sub_u32 v{vT1}, v{vT0}, v{vT1}")
a(f"v_mov_b32 v{vT0}, 0x0c0c0c0c")
for q, sel in ((0, 0x0c0c0100), (1, 0x0c0c0302)):
    a(f"v_mov_b32 v{vT3}, {hex(sel)}"); a(f"v_alignbit_b32 v{vT3}, v{vT3}, v{vT3}, v{vT2}")
    a(f"v_cmp_le_i32 vcc, {2*q}, v{vT1}"); a(f"v_cndmask_b32 v{MK+q}, v{vT0}, v{vT3}, vcc"); a(f"v_cndmask_b32 v{MK+2+q}, v{vT3}, v{vT0}, vcc")
a(f"v_cmp_eq_u32 vcc, 0, v{vG}"); a(f"v_cndmask_b32 v{vQR}, 0, -1, vcc")
a(f"s_mov_b32 s{sSC}, {hex(f2u((20 ** -0.5) * math.log2(math.e)))}")
a(f"s_or_b32 s{sT0}, s{sRB}, s{sMH}"); a(f"s_cselect_b32 s{sBF}, 0, {hex(NEG)}")
a(f"s_mul_i32 s{sKD}, s{sMH}, {9216 - 8 - 3080}"); a(f"s_add_u32 s{sKD}, s{sKD}, 3080")
a(f"s_mul_i32 s{sVD}, s{sMH}, {9216 - 6152}"); a(f"s_add_u32 s{sVD}, s{sVD}, 6152")
a(f"s_lshl1_add_u32 s{sT0}, s{sRB}, s{sMH}"); a(f"s_mul_i32 s{sOB}, s{sT0}, {3*20480}"); a(f"s_add_u32 s{sOB}, s{sOB}, {OWS}")
a(f"s_mov_b32 s{sSND}, 0")
a(f"s_cmp_lg_u32 s{sPH}, 1"); a("s_cbranch_scc1 L_us")
a("s_waitcnt vmcnt(0)"); trace(); a("s_barrier")
a.label("L_us")
a(f"s_min_u32 s{sT0}, s{sSGL}, 1"); a(f"s_lshr_b32 s{sT1}, s{sP}, 1"); a(f"s_add_u32 s{sT0}, s{sT0}, s{sT1}")
a(f"s_lshl1_add_u32 s{sT3}, s{sSGL}, s{sT1}"); a(f"s_lshr_b32 s{sT2}, s{sSGL}, 2"); a(f"s_add_u32 s{sT2}, s{sT2}, 10")
a(f"s_cmp_ge_u32 s{sP}, 4"); a(f"s_cselect_b32 s{sPOS}, s{sT2}, s{sT3}"); a(f"s_add_u32 s{sT2}, s{sSGL}, 11")
a(f"s_cmp_lg_u32 s{sLATE}, 0"); a(f"s_cselect_b32 s{sPOS}, s{sT2}, s{sPOS}"); a(f"s_cselect_b32 s{sT0}, 0, s{sT0}")
if O["ssig"] & 1:
    a(f"s_sub_u32 s{sT3}, s{sPOS}, 5"); a(f"s_cmp_lt_u32 s{sP}, 4"); a(f"s_cselect_b32 s{sT3}, s{sSGL}, s{sT3}")
    a(f"s_and_b32 s{sT2}, s2, 1"); a(f"s_lshl4_add_u32 s{sPOS}, s{sT2}, s{sPOS}")
    a(f"s_lshl1_add_u32 s{sT2}, s{sT2}, s{sMH}"); a(f"s_lshl3_add_u32 s{sT2}, s{sRB}, s{sT2}"); a(f"s_lshl_b32 s{sT2}, s{sT2}, 8")
    a(f"s_lshl3_add_u32 s{sT2}, s{sT3}, s{sT2}"); a(f"s_add_u32 s59, s{sT2}, {GB + 1024}")
else:
    a(f"s_add_u32 s{sT2}, s{sSGL}, 10"); a(f"v_sub_u32 v{vT0}, s{sT2}, v{vN}"); a(f"v_mul_u32_u24 v{vT1}, 52, v{vT0}"); a(f"v_lshrrev_b32 v{vT1}, 8, v{vT1}")
    a(f"v_mul_u32_u24 v{vT1}, 5, v{vT1}"); a(f"v_sub_u32 v{vT0}, v{vT0}, v{vT1}")
    a(f"s_sub_u32 s{sT3}, s{sPOS}, 5"); a(f"s_cmp_lt_u32 s{sP}, 4"); a("s_cbranch_scc1 L_ufs"); a(f"v_mov_b32 v{vT0}, s{sT3}"); a.label("L_ufs")
    a(f"s_and_b32 s{sT2}, s2, 1"); a(f"s_lshl4_add_u32 s{sPOS}, s{sT2}, s{sPOS}")
    a(f"s_lshl1_add_u32 s{sT2}, s{sT2}, s{sMH}"); a(f"s_lshl3_add_u32 s{sT2}, s{sRB}, s{sT2}"); a(f"s_lshl_b32 s{sT2}, s{sT2}, 8")
    a(f"s_add_u32 s{sT2}, s{sT2}, {GB + 1024}"); a(f"v_lshl_add_u32 v{vT0}, v{vT0}, 3, s{sT2}"); a(f"v_lshl_add_u32 v{vOF}, v{vN}, 16, v{vT0}")
a(f"s_mul_i32 s{sT0}, s{sT0}, 5"); a(f"s_add_u32 s{sT0}, s{sT0}, 4"); a(f"s_sub_u32 s{sT0}, s{sT0}, s{sSGL}")
a(f"s_lshl3_add_u32 s{sT1}, s{sMH}, {QA}")
a(f"v_add_u32 v{vT0}, s{sT0}, v{vG}"); a(f"v_lshrrev_b32 v{vT1}, 2, v{vT0}"); a(f"v_mul_u32_u24 v{vT1}, {QT - 1024}, v{vT1}")
a(f"v_lshl_add_u32 v{vT1}, v{vT0}, 8, v{vT1}"); a(f"v_lshl_add_u32 v{vT2}, v{vN}, 4, s{sT1}"); a(f"v_add_u32 v{vQK}, v{vT1}, v{vT2}")
a(f"s_lshl_b32 s{sT0}, s{sT0}, 2"); a(f"v_lshl_add_u32 v{vT2}, v{vG}, 8, s{sT1}")
a(f"v_add_u32 v{vT0}, s{sT0}, v{vN}"); a(f"v_lshrrev_b32 v{vT1}, 4, v{vT0}"); a(f"v_mul_u32_u24 v{vT1}, {QT - 256}, v{vT1}")
a(f"v_lshl_add_u32 v{vT1}, v{vT0}, 4, v{vT1}"); a(f"v_add_u32 v{vVM}, v{vT1}, v{vT2}")
a(f"s_lshr_b32 s{sT2}, s{sT0}, 4"); a(f"s_mul_i32 s{sT2}, s{sT2}, {QT - 256}"); a(f"s_lshl4_add_u32 s{sT2}, s{sT0}, s{sT2}"); a(f"s_add_u32 s{sT2}, s{sT2}, {QT}")
a(f"v_and_b32 v{vT0}, 3, v{vN}"); a(f"v_lshl_add_u32 v{vT0}, v{vT0}, 4, s{sT2}"); a(f"v_add_u32 v{vVR}, v{vT0}, v{vT2}")
a(f"s_lshl_b32 s{sT0}, s{sPOS}, 9"); a(f"v_lshrrev_b32 v{vT0}, 5, v{vLANE}"); a(f"v_mul_u32_u24 v{vT0}, {20480 - 512}, v{vT0}")
a(f"v_lshl_add_u32 v{vT0}, v{vLANE}, 4, v{vT0}"); a(f"v_add_u32 v{vOM}, s{sT0}, v{vT0}")
a(f"s_lshl_b32 s{sT0}, s{sPOS}, 7"); a(f"s_add_u32 s{sT0}, s{sT0}, 16384"); a(f"v_mul_u32_u24 v{vT0}, 20480, v{vG}")
a(f"v_lshl_add_u32 v{vT0}, v{vN}, 3, v{vT0}"); a(f"v_add_u32 v{vOX}, s{sT0}, v{vT0}")
a(f"s_cmp_eq_u32 s{sPH}, 1"); a("s_cbranch_scc1 L_pb10")
a(f"s_cmp_eq_u32 s{sPH}, 2"); a("s_cbranch_scc1 L_upre")

a(f"s_setprio {O['prioG']}")
AQ, AK, AV, XF, WF = 8, 32, 60, 88, 116
vXB, vWB, vXA, vWA, vDA = 140, 141, 142, 144, 145
sSLOT, sGI, sXS = 41, 42, 70
a(f"v_lshrrev_b32 v{vT1}, 1, v{vN}"); a(f"v_xor_b32 v{vT1}, v{vT1}, v{vG}"); a(f"v_lshlrev_b32 v{vT1}, 4, v{vT1}"); a(f"v_lshl_add_u32 v{vXB}, v{vN}, 7, v{vT1}")
a(f"v_bfe_u32 v{vT0}, v{vLANE}, 2, 2")
a(f"v_lshl_add_u32 v{vT1}, v{vG}, 3, v{vT0}"); a(f"v_lshlrev_b32 v{vT1}, 7, v{vT1}")
a(f"v_bfe_u32 v{vT2}, v{vLANE}, 3, 2")
a(f"v_xor_b32 v{vT2}, s{sP}, v{vT2}"); a(f"v_lshl_add_u32 v{vT1}, v{vT2}, 5, v{vT1}")
a(f"v_and_b32 v{vT2}, 3, v{vLANE}"); a(f"v_lshl_add_u32 v{vT1}, v{vT2}, 3, v{vT1}"); a(f"v_add_u32 v{vWB}, {XU}, v{vT1}")
for r in range(AQ, AQ + 80): a(f"v_mov_b32 v{r}, 0")
a(f"s_mov_b32 s{sSLOT}, 0"); a(f"s_mov_b32 s{sGI}, 0")
a(f"v_mov_b32 v{vXA}, v{vXB}"); a(f"v_xor_b32 v{vXA+1}, 64, v{vXB}"); a(f"v_mov_b32 v{vWA}, v{vWB}")
a(f"s_add_u32 s{sT0}, s{sP}, 1"); a(f"s_mul_i32 s{sT0}, s{sT0}, {QT}"); a(f"s_add_u32 s{sT0}, s{sT0}, {QA}"); a(f"v_lshl_add_u32 v{vDA}, v{vLANE}, 4, s{sT0}")
a(f"v_lshlrev_b32 v{vT3}, 4, v{vLANE}")
a("s_waitcnt lgkmcnt(0)")
srd(a, SRD_P, sWS, sWS + 1, WSN)
a(f"s_lshl_b32 s{sT1}, s{sSG}, 5"); a(f"s_add_u32 s{sT1}, s{sT1}, s{sRB}"); a(f"s_mul_i32 s{sXS}, s{sT1}, {QT}"); a(f"s_add_u32 s{sXS}, s{sXS}, {XWS}")
a(f"s_add_u32 s{sXS+1}, s{sXS}, 4096"); a(f"s_add_u32 s{sXS+2}, s{sXS}, 8192")
a(f"s_lshl_b32 s{sT1}, s{sT1}, 11"); a(f"s_add_u32 s{sT1}, s{sT1}, {GB + 32*2048 + 512}")
a(f"s_cmp_eq_u32 s{sWV}, 7"); a(f"s_cselect_b32 s{sSND}, s{sT1}, 0"); a(f"s_cmp_eq_u32 s{sSGL}, 4"); a(f"s_cselect_b32 s{sSND}, 0, s{sSND}")
a(f"s_load_dword s{sTAG}, s[{sWS}:{sWS+1}], {EPOCH}")
trace()
a("s_barrier")
trace()
def xread(m, ks): return ("r", f"ds_read_b128 {v(XF+4*m,4)}, v{vXA+ks} offset:{2048*m}", ("X", m, ks))
def wread(t, e, ks): return ("r", f"ds_read_b64_tr_b16 {v(WF+12*ks+4*t+2*e,2)}, v{vWA} offset:{12288*ks + 4096*t + 512*e}", ("W", t, ks))
def mm(m, ks):
    out = []
    for t in (1, 2, 0):
        if t == 0 and m == 0: continue
        acc = [AQ - 4, AK, AV][t] + 4 * m; w_, x_ = v(WF + 12 * ks + 4 * t, 4), v(XF + 4 * m, 4)
        out.append(("m", f"{MF} {v(acc,4)}, {x_ if t == 2 else w_}, {w_ if t == 2 else x_}, {v(acc,4)}", [("W", t, ks), ("X", m, ks)]))
    return out
def kstep(ks): return [x for m in range(7) for x in mm(m, ks)]
XFREE = [1, 4, 7, 10, 13, 16, 19]
def rorder(nk): return [wread(1, 0, nk), wread(1, 1, nk), xread(0, nk), wread(2, 0, nk), wread(2, 1, nk), xread(1, nk), wread(0, 0, nk), wread(0, 1, nk)] + [xread(m, nk) for m in range(2, 7)]
for r in rorder(0): a(r[1])
a("s_waitcnt lgkmcnt(0)")
mk_tag()
def sched(ks, start, per):
    gaps = [[] for _ in range(20)]
    q = rorder(1 - ks)
    for gp in range(start, 20):
        c = 0
        while q and (c < per or gp == 19) and (q[0][2][0] == "W" or XFREE[q[0][2][1]] <= gp):
            gaps[gp].append(q.pop(0)); c += 1
    assert not q
    return gaps
BR = O["br"]
seq = []
g0 = sched(0, O["g0s"], 1)
g0[12] += [T(f"s_add_u32 s{sSLOT}, s{sSLOT}, {SLOT}")]
g0[14] += [T(f"s_cmp_eq_u32 s{sSLOT}, {3*SLOT}"), T(f"s_cselect_b32 s{sSLOT}, 0, s{sSLOT}")]
g0[15] += [T(f"v_add_u32 v{vWA}, s{sSLOT}, v{vWB}")]
g0[17] += [T(f"v_add_u32 v{vXA}, s{sSLOT}, v{vXB}")]
for i, m in enumerate(kstep(0)): seq += [m] + g0[i]
g1 = sched(1, BR + (O["bmode"] & 1), O["per"])
g1[1] += [T(f"v_xor_b32 v{vXA+1}, 64, v{vXA}")]
g1[2] += [T(f"s_add_u32 s{sGI}, s{sGI}, 1")]
def bar():
    a("s_barrier")
    if O["gtr"]: trace()
if O["bmode"] & 2:
    g1[BR - 2] += [("m", "", [("X", 6, 1)])]; g1[BR] = [("t", bar)] + g1[BR]
else: g1[BR] = [("m", "", [("X", 6, 1)]), ("t", bar)] + g1[BR]
g1[18] += [T(f"s_cmp_lt_u32 s{sGI}, 9")]
for i, m in enumerate(kstep(1)): seq += [m] + g1[i]
if O["al"]: a(f".p2align {O['al']}")
a.label("L_gl")
emit_seq(seq, True)
a("s_cbranch_scc1 L_gl")
if O.get("twice"): a("s_mov_b32 s87, 0"); a.label("L_tw")
trace_at(11)
def qreg(m): return AQ + 4 * (m - 1)
slots = [(qreg(1+i), (0, 1+i), qreg(4+i), (0, 4+i)) for i in range(3)] + [(AK+4*i, (1, i), AK+4*(i+3), (1, i+3)) for i in range(3)] \
      + [(AV+4*i, (2, i), AV+4*(i+3), (2, i+3)) for i in range(3)] + [(AK+24, (1, 6), AV+24, (2, 6))]
order = [(0, 0), (3, 0), (1, 0), (6, 0), (0, 1), (3, 1), (4, 0), (6, 1), (2, 0), (1, 1), (5, 0), (4, 1), (2, 1), (5, 1)]
ml = [(m, ks, x) for m, ks in order for x in mm(m, ks)]
def done_at(t, m): return [i for i, x in enumerate(ml) if x[1] == 1 and x[0] == m and ("W", t, 1) in x[2][2]][0]
def last_stage(send):
    work = []
    for p, (d, td, sr, ts) in enumerate(slots):
        work.append((done_at(*td), [T(f"v_cvt_pk_bf16_f32 v{d}, v{d}, v{d+1}"), T(f"v_cvt_pk_bf16_f32 v{d+1}, v{d+2}, v{d+3}")]))
        st = [T(f"buffer_store_dwordx4 {v(d,4)}, v{vT3}, s[{SRD_P}:{SRD_P+3}], s{sXS + (p >> 2)} offen offset:{1024*(p&3)} sc1")] if send else []
        work.append((max(done_at(*ts), done_at(*td)), [T(f"v_cvt_pk_bf16_f32 v{d+2}, v{sr}, v{sr+1}"), T(f"v_cvt_pk_bf16_f32 v{d+3}, v{sr+2}, v{sr+3}")] + st +
                     [("r", f"ds_write_b128 v{vDA}, {v(d,4)} offset:{1024*p}", ("D", p))]))
    work.sort(key=lambda x: x[0])
    flat = [(w[0], t) for w in work for t in w[1]]
    seq = [("r", "", r[2]) for r in rorder(0)]
    pend = [wread(t, e, 1) for t in (1, 2, 0) for e in range(2)]
    for i, (m, ks, x) in enumerate(ml):
        seq.append(x)
        if ks == 0 and (i + 1 == len(ml) or ml[i+1][:2] != (m, ks)): pend.insert(0, xread(m, 1))
        c = 0
        if pend: seq.append(pend.pop(0)); c += 1
        while flat and c < O["lden"] and flat[0][0] <= i - O["ldis"]:
            seq.append(flat.pop(0)[1]); c += 1
    seq.append(("t", lambda: trace_at(12)))
    seq += [x[1] for x in flat]
    emit_seq(seq, False, 0)
    a("s_branch L_pb10b")
a(f"s_cmp_lg_u32 s{sSND}, 0"); a("s_cbranch_scc1 L_lsend")
last_stage(False)
a.label("L_lsend")
last_stage(True)
a.label("L_pb10")
srd(a, SRD_P, sWS, sWS + 1, WSN)
mk_tag()
a(f"s_setprio {O['prioL']}")
a.label("L_pb10b")
a(f"v_mov_b32 v{vTG}, s{sTAG}")
KOP, QOP, VM, VX, SO, SP, LA, LB, M, PP, BF, vS, ONE = 88, 104, 116, 124, 8, 20, 32, 36, 40, 44, 136, 132, 140
OM, OX, SM, OPK, XP = 8, 20, 88, 60, 68
a.label("L_upre")
a(f"v_add_u32 v{vS}, s{sKD}, v{vQK}"); a(f"v_add_u32 v{vS+1}, s{sVD}, v{vVM}"); a(f"v_add_u32 v{vS+2}, s{sVD}, v{vVR}")
a(f"s_cmp_eq_u32 s{sPH}, 2"); a("s_cbranch_scc1 L_unit")
for r in range(4): a(f"v_add_f32 v{BF+r}, s{sBF}, v{BP+r}")
a("s_waitcnt lgkmcnt(0)")
def x_signal():
    d = a.newlabel("Lxs")
    a(f"s_cmp_eq_u32 s{sSND}, 0"); a(f"s_cbranch_scc1 {d}")
    if not O["nd"] & 4: a("s_waitcnt vmcnt(0)")
    a(f"s_atomic_swap s{sTAG}, s[{sWS}:{sWS+1}], s{sSND}")
    trace_at(14)
    a.label(d)
if O["nd"] & 4: x_signal()
trace_at(13)
if O.get("twice"): a("s_add_u32 s87, s87, 1"); a("s_barrier"); a("s_cmp_lt_u32 s87, 2"); a("s_cbranch_scc1 L_tw")
if O["solo"]: a("s_waitcnt lgkmcnt(0)"); finish()
a("s_barrier")
a.label("L_unit")
a(f"s_cmp_eq_u32 s{sLATE}, 0"); a("s_cbranch_scc1 L_ugo")
if O["xz"]:
    a(f"s_mov_b32 s{sSPIN}, 0"); a.label("L_xw")
    a(f"ds_read_b32 v{vT0}, v{vFL} offset:{F_XL}"); a("s_waitcnt lgkmcnt(0)"); a(f"v_readfirstlane_b32 s{sT3}, v{vT0}")
    a(f"s_cmp_eq_u32 s{sT3}, 0"); a("s_cbranch_scc1 L_xwd")
    if O["xsl"]: a(f"s_sleep {O['xsl']}")
    spin_tail("L_xw", 8); a.label("L_xwd")
else: lds_wait(F_XL, 1, sleep=O["xsl"])
a("s_setprio 3")
trace_at(15)
a.label("L_ugo")
def ft(i):
    if not O["nd"] & 4 and O["xp"] == i: x_signal()
    if O["fine"] == 1:
        a(f"s_lshl3_add_u32 s94, s{sLATE}, {32+i}"); trace()
ft(0)
def rd2(dst, base, o0, o1):
    if O["r2"]: a(f"ds_read2st64_b64 {v(dst,4)}, v{base} offset0:{o0} offset1:{o1}")
    else: rd(dst, base, 512 * o0); rd(dst + 2, base, 512 * o1)
def rd(dst, base, off): a(f"ds_read_b64 {v(dst,2)}, v{base} offset:{off}")
rd2(QOP, vQK, 0, 20); rd2(KOP, vQK, 6, 26); rd2(KOP + 4, vQK, 8, 28)
rd2(QOP + 4, vQK, 2, 22); rd2(KOP + 8, vQK, 10, 30)
rd2(QOP + 8, vQK, 4, 24); rd2(KOP + 12, vS, 0, 20)
def vreads():
    for r_, b_, k_ in ((VM, vVM, 1), (VX, vVR, 2)):
        rd2(r_ + 4, b_, 14, 12); rd(r_ + 2, b_, 8192); rd(r_, vS + k_, 0)
ft(1)
R2 = 1 if O["r2"] else 2
for i in range(3):
    a(f"s_waitcnt lgkmcnt({R2 * (6 - [0, 3, 5][i])})")
    for q in (2, 3): a(f"v_and_b32 v{QOP+4*i+q}, v{QOP+4*i+q}, v{vQR}")
    a(f"s_waitcnt lgkmcnt({R2 * (4 - 2*i)})")
    a(f"{MF} {v(SP+4*i,4)}, {v(KOP+4*i,4)}, {v(QOP+4*i,4)}, {v(BF if i == 0 else BP,4)}")
    a(f"{MF} {v(SO+4*i,4)}, {v(KOP+4*(i+1),4)}, {v(QOP+4*i,4)}, {v(BO,4)}")
vreads()
ft(2)
for h in range(3):
    a(f"v_max3_f32 v{LA+h}, v{SP+4*h}, v{SP+4*h+1}, v{SO+4*h}"); a(f"v_max3_f32 v{LB+h}, v{SP+4*h+2}, v{SP+4*h+3}, v{SO+4*h+2}")
    a(f"v_max_f32 v{LA+h}, v{LA+h}, v{SO+4*h+1}"); a(f"v_max_f32 v{LB+h}, v{LB+h}, v{SO+4*h+3}")
    if h == 2: a(f"v_permlane32_swap_b32 v{M}, v{M+1}")
    a(f"v_max_f32 v{M+h}, v{LA+h}, v{LB+h}")
a(f"v_max_f32 v{M}, v{M}, v{M+1}")
a(f"s_add_u32 s{sT0}, s{sOB}, {2*20480}")
a(f"v_permlane32_swap_b32 v{M+2}, v{M+3}"); a(f"v_max_f32 v{M+2}, v{M+2}, v{M+3}")
a(f"v_permlane16_swap_b32 v{M}, v{M+2}"); a(f"v_max_f32 v{M}, v{M}, v{M+2}")
a(f"v_mul_f32 v{M+2}, s{sSC}, v{M}"); a(f"v_mul_f32 v{M}, s{sSC}, v{M}")
a(f"v_permlane16_swap_b32 v{M}, v{M+2}")
a(f"v_mov_b32 v{M+1}, v{M}"); a(f"v_mov_b32 v{M+3}, v{M+2}")
a("s_waitcnt lgkmcnt(0)")
a(f"v_permlane32_swap_b32 v{M}, v{M+1}"); a(f"v_permlane32_swap_b32 v{M+2}, v{M+3}")
ft(3)
for h in range(3):
    a(f"v_fma_f32 v{LA+h}, v{LA+h}, s{sSC}, -v{M+h}"); a(f"v_fma_f32 v{LB+h}, v{LB+h}, s{sSC}, -v{M+h}")
for h in range(3):
    a(f"v_exp_f32 v{LA+h}, v{LA+h}"); a(f"v_exp_f32 v{LB+h}, v{LB+h}")
for h in range(3): a(f"v_add_f32 v{M+h}, v{LA+h}, v{LB+h}")
a(f"v_permlane32_swap_b32 v{M}, v{M+1}"); a(f"v_permlane32_swap_b32 v{M+2}, v{M+3}")
a(f"v_add_f32 v{M}, v{M}, v{M+1}"); a(f"v_add_f32 v{M+2}, v{M+2}, v{M+3}")
a(f"v_permlane16_swap_b32 v{M}, v{M+2}"); a(f"v_add_f32 v{M}, v{M}, v{M+2}")
a(f"v_rcp_f32 v{M+2}, v{M}"); a(f"v_rcp_f32 v{M}, v{M}")
a(f"v_permlane16_swap_b32 v{M}, v{M+2}")
a(f"v_mov_b32 v{M+1}, v{M}"); a(f"v_mov_b32 v{M+3}, v{M+2}")
a(f"v_permlane32_swap_b32 v{M}, v{M+1}"); a(f"v_permlane32_swap_b32 v{M+2}, v{M+3}")
ft(4)
def pv(i):
    a(f"{MF} {v(OM+4*i,4)}, {v(VM+2*(2-i),4)}, {v(PP+4*i,4)}, 0")
    a(f"{MF} {v(OX+4*i,4)}, {v(VX+2*(2-i),4)}, {v(PP+4*i,4)}, 0")
for h in range(3):
    a(f"v_mul_f32 v{LA+h}, v{LA+h}, v{M+h}"); a(f"v_mul_f32 v{LB+h}, v{LB+h}, v{M+h}")
    a(f"v_cvt_pk_bf16_f32 v{LA+h}, v{LA+h}, v{LB+h}")
    for q in range(4): a(f"v_perm_b32 v{PP+4*h+q}, v{LA+h}, v{LA+h}, v{MK+q}")
    if h > 0: pv(h - 1)
pv(2)
ft(5)
pack(OPK, OM); pack(XP, OX); pack(OPK + 2, OM + 4)
a(f"v_permlane32_swap_b32 v{OPK}, v{OPK+2}"); a(f"v_permlane32_swap_b32 v{OPK+1}, v{OPK+3}")
a(f"buffer_store_dwordx4 {v(OPK,4)}, v{vOM}, s[{SRD_P}:{SRD_P+3}], s{sOB} offen sc1")
pack(OPK + 4, OM + 8)
a(f"v_permlane32_swap_b32 v{OPK+4}, v{OPK+6}"); a(f"v_permlane32_swap_b32 v{OPK+5}, v{OPK+7}")
a("s_mov_b32 exec_lo, 0"); pack(XP, OX + 8)
a("s_mov_b64 exec, 0xffff0000"); pack(XP, OX + 4)
a("s_mov_b32 exec_lo, -1")
a(f"buffer_store_dwordx4 {v(OPK+4,4)}, v{vOM}, s[{SRD_P}:{SRD_P+3}], s{sT0} offen sc1")
a("s_mov_b32 exec_hi, 0xffff")
a(f"buffer_store_dwordx2 {v(XP,2)}, v{vOX}, s[{SRD_P}:{SRD_P+3}], s{sOB} offen sc1")
a("s_mov_b64 exec, -1")
if STAMPS_ON: a(f"s_lshl1_add_u32 s94, s{sLATE}, 16"); trace()
def osig():
    a(f"s_lshl_b32 s{sT0}, s{sLATE}, 4"); a(f"v_add_u32 v56, s{sT0}, v{vFL}")
    lds_add(F_EA, vaddr=56)
    a(f"s_cmp_lg_u32 s{sPH}, 0"); a("s_cbranch_scc1 L_lsig")
    a(f"s_lshl_b32 s{sT0}, s{sMH}, 3"); a(f"v_add_u32 v56, s{sT0}, v{vFL}")
    if not O["nd"] & 8: a("s_waitcnt vmcnt(0)")
    lds_add_rtn(F_ED, sT1, vaddr=56)
    a(f"s_cmp_lg_u32 s{sT1}, 1"); a("s_cbranch_scc1 L_nosig")
    if O["ssig"] & 1:
        for n in range(5):
            a(f"s_atomic_swap s{sTAG}, s[{sWS}:{sWS+1}], s59 offset:{n << 16}"); a(f"s_atomic_swap s{sTAG}, s[{sWS}:{sWS+1}], s59 offset:{(n + 5) << 16}")
            if n < 4: a(f"s_cmp_eq_u32 s{sSGL}, {n}"); a(f"s_cselect_b32 s{sT0}, 32, -8"); a(f"s_add_u32 s59, s59, s{sT0}")
        a("s_branch L_nosig")
    a.label("L_lsig")
    if not O["nd"] & 8: a("s_waitcnt vmcnt(0)")
    if O["ssig"] & 1:
        for n in range(10): a(f"s_atomic_swap s{sTAG}, s[{sWS}:{sWS+1}], s59 offset:{n << 16}")
    else:
        a("s_mov_b64 exec, 0x3ff")
        a(f"global_atomic_swap v{vOF}, v{vTG}, s[{sWS}:{sWS+1}] sc1")
        a("s_mov_b64 exec, -1")
    a.label("L_nosig")
    trace()
if O["nd"] & 8: osig()
ACC, OF = 8, 56
WRL = [140, 144, 148, 152, 156]; NB = len(WRL)
vWT, vL16p, vL16b, vL8p, vYA, vSW, vOG, vGA = 160, 5, 6, 7, 166, 1, 2, 164
sM, sFA, sKH, sLI, sOO, sXW, sXR, sGQ, SRD_X = 72, 76, 75, 78, 79, 80, 81, 82, 48
a(f"s_cmp_lg_u32 s{sPH}, 0"); a("s_cbranch_scc1 L_nops")
a(f"s_lshr_b32 s{sKH}, s{sP}, 1")
a(f"s_lshl_b32 s{sT0}, s{sKH}, 13"); a(f"s_add_u32 s{sM}, s{sOB}, s{sT0}"); a(f"s_add_u32 s{sM+1}, s{sM}, 20480"); a(f"s_add_u32 s{sM+2}, s{sM}, 40960")
gblock(sT0, sSG, sRB, 1024); a(f"s_lshl_b32 s{sT1}, s{sP}, 8"); a(f"s_add_u32 s{sT0}, s{sT0}, s{sT1}"); ptr(sFA, sT0)
a(f"s_mul_i32 s{sXW}, s{sP}, 6144"); a(f"s_add_u32 s{sXW}, s{sXW}, {XCH}"); a(f"s_xor_b32 s{sT0}, s{sP}, 2"); a(f"s_mul_i32 s{sXR}, s{sT0}, 6144"); a(f"s_add_u32 s{sXR}, s{sXR}, {XCH}")
a(f"s_mul_i32 s{sGQ}, s{sMH}, 12288"); a(f"s_lshl_b32 s{sT0}, s{sKH}, 11"); a(f"s_add_u32 s{sGQ}, s{sGQ}, s{sT0}"); a(f"s_add_u32 s{sGQ}, s{sGQ}, {GQA}")
a(f"s_lshl1_add_u32 s{sT0}, s{sRB}, s{sMH}"); a(f"s_mul_i32 s{sOO}, s{sT0}, {48*1280}"); a(f"s_lshl1_add_u32 s{sT0}, s{sSG}, s{sKH}"); a(f"s_lshl_b32 s{sT0}, s{sT0}, 6"); a(f"s_add_u32 s{sOO}, s{sOO}, s{sT0}")
srd(a, SRD_X, sOUT, sOUT + 1, 2048 * 1280)
a(f"v_lshrrev_b32 v58, 2, v{vLANE}"); a(f"v_and_b32 v59, 3, v{vLANE}"); a(f"v_bfe_u32 v57, v{vLANE}, 3, 2")
a(f"s_mul_i32 s{sT0}, s{sKH}, 6144")
a(f"s_sub_u32 s{sT0}, 16384, s{sT0}"); a(f"v_lshl_add_u32 v{vL8p}, v{vLANE}, 3, s{sT0}")
a(f"s_mul_i32 s{sT0}, s{sKH}, {10*4096}"); a(f"v_lshl_add_u32 v{vL16p}, v58, 7, s{sT0}"); a(f"v_lshl_add_u32 v{vL16p}, v59, 3, v{vL16p}")
a(f"s_lshl_b32 s{sT0}, s{sKH}, 1"); a(f"v_xor_b32 v{vL16b}, s{sT0}, v57"); a(f"v_lshl_add_u32 v{vWT}, v{vL16b}, 5, v{vL16p}")
for t in range(1, 4): a(f"v_xor_b32 v{vWT+t}, {32*t}, v{vWT}")
a(f"v_lshlrev_b32 v{vL16p}, 4, v{vLANE}"); a(f"v_add_u32 v{vL16b}, 4096, v{vL16p}")
a("v_xor_b32 v59, v59, v57"); a("v_mul_u32_u24 v58, 1280, v58"); a("v_lshl_add_u32 v58, v59, 4, v58")
a(f"s_mul_i32 s{sT0}, s{sMH}, 192"); a(f"s_add_u32 s{sT0}, s{sT0}, {GTB}"); a(f"v_lshl_add_u32 v57, v{vN}, 2, s{sT0}")
a(f"v_bfe_u32 v59, v{vN}, 1, 2"); a(f"v_lshl_add_u32 v{vSW}, v{vN}, 6, s{sXR}"); a(f"v_lshlrev_b32 v59, 1, v59"); a(f"v_xor_b32 v59, v59, v{vG}"); a(f"v_lshl_add_u32 v{vSW}, v59, 3, v{vSW}")
a(f"v_mov_b32 v{vOG}, v58")
a.label("L_nops")
if not O["nd"] & 8: osig()
a(f"s_cmp_eq_u32 s{sPH}, 0"); a("s_cbranch_scc1 L_op")
a(f"s_lshr_b32 s{sT1}, s{sSGL}, 2"); a(f"s_andn2_b32 s{sT0}, s{sT1}, s{sLATE}"); a("s_cbranch_scc0 L_pexit")
a(f"s_mov_b32 s{sLATE}, 1"); a(f"s_mov_b32 s{sPH}, 2"); a("s_branch L_us")

a.label("L_op")
LA_ = O["la"]; NS_ = LA_ + 1
AA, OMG, vXW, vXR, vAR, vFM, vFP, vFA, FLV = OF + 12 * NS_, 166, 6, 5, 7, 164, 165, 166, 140
assert AA + 24 <= 140
def ofr(j, m): return OF + 12 * (j % NS_) + 4 * m
OFL = ["sc1", "", "sc0", "nt", "sc0 sc1"][O["ofl"]]
def o_loads(j):
    kind, x = kinfo(0, j); out = []
    for m in range(3):
        if j < 5: out.append(((j, m), f"s_add_u32 s{sT0}, s{sM+m}, s85\nbuffer_load_dwordx4 {v(ofr(j,m),4)}, v{vL16p}, s[{SRD_P}:{SRD_P+3}], s{sT0} offen {OFL}"
                              + ("\ns_add_u32 s85, s85, 1024\ns_cmp_eq_u32 s85, 5120\ns_cselect_b32 s85, 0, s85" if m == 2 and j < 4 else "")))
        elif kind == "m": out.append(((j, m), f"buffer_load_dwordx4 {v(ofr(j,m),4)}, v{vL16b}, s[{SRD_P}:{SRD_P+3}], s{sM+m} offen offset:{1024*(x-4)} {OFL}"))
        else:
            for e in range(2): out.append(((j, m), f"buffer_load_dwordx2 {v(ofr(j,m)+2*e,2)}, v{vL8p}, s[{SRD_P}:{SRD_P+3}], s{sM+m} offen offset:{1024*x + 512*e} {OFL}"))
    return out
NEED = {0: [0], 1: [1], 2: [2], 3: [3], 4: [4], 5: [], 6: [5, 6], 7: [7, 8], 8: [9, 10], 9: []}
def refresh(ks=(0, 8)):
    if min(ks) < 8: a(f"s_load_dwordx16 s[4:19], s[{sFA}:{sFA+1}], 0 glc")
    if max(ks) >= 8: a(f"s_load_dwordx8 s[20:27], s[{sFA}:{sFA+1}], 64 glc")
slow = []
def need(j):
    if not NEED[j]: return
    a.label(f"L_nb{j}")
    for k in NEED[j]: a(f"s_cmp_lg_u32 s{4+2*k}, s{sTAG}"); a(f"s_cbranch_scc1 L_ns{j}")
    a.label(f"L_ng{j}")
    slow.append(j)
def ahead(j):
    ks = NEED.get(j) or NEED.get(j + 1)
    if not ks: return
    d = a.newlabel("Lah"); r = a.newlabel("Lar")
    for k in ks[:-1]: a(f"s_cmp_lg_u32 s{4+2*k}, s{sTAG}"); a(f"s_cbranch_scc1 {r}")
    a(f"s_cmp_eq_u32 s{4+2*ks[-1]}, s{sTAG}"); a(f"s_cbranch_scc1 {d}")
    a.label(r); refresh(ks); a.label(d)
RE = O["re"]
fr = [(j, t) for j in range(10 - RE) for t in range(4)] + [(j, t) for j in range(10 - RE, 10) for t in (2, 3)] + [(j, t) for j in range(10 - RE, 10) for t in (0, 1)]
def wfrag(f):
    j, t = fr[f]
    return [("r", f"ds_read_b64_tr_b16 {v(WRL[f % NB]+2*e,2)}, v{vWT+t} offset:{4096*j + 2048*e}", ("W", f)) for e in range(2)]
a(f"s_lshl_b32 s85, s{sSGL}, 10"); a(f"s_mov_b32 s{sSPIN}, 0")
a(f"v_mov_b32 v{AA}, v57")
trace_at(22)
refresh(); a("s_waitcnt lgkmcnt(0)")
issued = []
for j in range(LA_):
    need(j)
    if j == 0: trace_at(21)
    for k, x in o_loads(j): a(x); issued.append(k)
    if j == 0:
        a(f"s_mov_b32 s86, s{sSPIN}"); lds_wait(F_WO, 6 if CWB else 2); a(f"s_mov_b32 s{sSPIN}, s86")
        for f in range(NB):
            for x in wfrag(f): a(x[1])
trace_at(23)
seq = [("r", "", x[2]) for f in range(NB) for x in wfrag(f)]
pendl = []; pendw = []; seen = set(); post = {}
nsend = 40 - 2 * RE
def vm(k):
    def fn():
        last = max(i for i, x in enumerate(issued) if x == k)
        a(f"s_waitcnt vmcnt({len(issued) - 1 - last})")
    return fn
def ld(k, x):
    def fn(): a(x); issued.append(k)
    return fn
for f, (j, t) in enumerate(fr):
    if (j, 0) not in seen:
        if O["fine"] == 2: seq.append(("t", lambda j=j: trace_at(32 + 2 * j)))
        if O["lj"] == 0 or j + LA_ < 7:
            if j + LA_ < 10:
                seq.append(("t", lambda j=j: (need(j + LA_), ahead(j + LA_ + 1), trace_at(24) if j + LA_ == 8 else None)))
                pendl = o_loads(j + LA_)
        elif j == O["lj"] - 2: seq.append(("t", lambda: refresh()))
        elif j == O["lj"]:
            seq.append(("t", lambda: (need(7), need(8), trace_at(24))))
            pendl = o_loads(7) + o_loads(8) + o_loads(9)
            seq += [("t", ld(*pendl.pop(0))) for _ in range(3 if j < 7 else 12)]
    if f == nsend - 3:
        seq.append(("r", f"ds_read2_b32 {v(AA+4,2)}, v{vFL} offset0:{F_EA//4} offset1:{F_LD//4}", ("F",)))
        seq += [T(f"v_add_u32 v{vXW}, s{sXW}, v{vL16p}"), T(f"v_add_u32 v{vAR}, s{sGQ}, v{vL16p}"), T(f"v_add_u32 v{vXR}, s{sXR}, v{vL16p}")]
    if f == nsend - 2:
        seq += [T(f"s_lshl_b32 s{sT0}, s{sP}, 2"), T(f"v_add_u32 v{vFM}, s{sT0}, v{vFL}"), T(f"v_xor_b32 v{vFP}, 8, v{vFM}"),
                T(f"s_lshl_b32 s{sT0}, s{sKH}, 2"), T(f"v_add_u32 v{vFA}, s{sT0}, v{vFL}")]
    if f == nsend - 1:
        seq.append(("m", f"v_add_u32 v{AA+4}, v{AA+4}, v{AA+5}", [("F",)]))
        seq += [T(f"s_lshr_b32 s{sT0}, s{sSGL}, 2"), T(f"v_readfirstlane_b32 s{sT1}, v{AA+4}"), T(f"s_lshl1_add_u32 s84, s{sT0}, 6")]
    if f == nsend:
        def chk():
            a(f"s_cmp_lt_u32 s{sT1}, s84"); a("s_cbranch_scc1 L_fslow"); a.label("L_fgo"); trace_at(25)
        seq.append(("t", chk))
        wr = [("r", f"ds_write_b128 v{vXW}, {v(ACC+16*m+8+4*t_,4)} offset:{1024*(2*m+t_)}", ("S",)) for t_ in range(2) for m in range(3)]
        wr.append(("r", f"ds_write_b32 v{vFM}, v{vFM} offset:{F_XM}", ("S",)))
    for m in range(3):
        acc = v(ACC + 16 * m + 4 * t, 4)
        txt = f"{MF} {acc}, {v(WRL[f % NB],4)}, {v(ofr(j,m),4)}, {acc if j else 0}"
        if (j, m) not in seen:
            seq.append(("t", vm((j, m)))); seen.add((j, m))
            if O["fine"] == 2 and m == 2: seq.append(("t", lambda j=j: trace_at(33 + 2 * j)))
        seq.append(("m", txt, [("W", f)]) if m == 0 else T(txt))
        if pendw and m < 2: seq.append(pendw.pop(0))
        if pendl and (m == 2 or len(pendl) > 4 - t): seq.append(("t", ld(*pendl.pop(0))))
        if f >= nsend and wr and (f > nsend or m > 0): seq.append(wr.pop(0))
    assert not pendw
    if f + NB < 40: pendw = wfrag(f + NB)
seq += wr
emit_seq(seq, False, 0)
trace_at(26)
PX = [OF + 12 * k for k in range(NS_) if k not in (8 % NS_, 9 % NS_)][:2]
def pxr(i): return PX[i // 3] + 4 * (i % 3)
G0_ = 144
a(f"v_mov_b32 v143, v{AA}")
a("s_waitcnt lgkmcnt(0)")
a(f"v_xor_b32 v{vXW}, 32, v{vSW}")
def rd_a():
    a(f"ds_read2_b32 {v(G0_,2)}, v143 offset0:0 offset1:16"); a(f"ds_read_b32 v{G0_+4}, v143 offset:128")
    for i in range(6): a(f"ds_read_b128 {v(AA+4*i,4)}, v{vAR} offset:{4096*(i//2) + 1024*(i%2)}")
a.label("L_fb")
a(f"ds_read_b32 v{FLV}, v{vFP} offset:{F_XM}"); a(f"ds_read_b32 v{FLV+1}, v{vFA} offset:{F_YL}")
for i in range(6): a(f"ds_read_b128 {v(pxr(i),4)}, v{vXR} offset:{1024*i}")
a("s_waitcnt lgkmcnt(6)")
rd_a()
a(f"v_readfirstlane_b32 s{sT0}, v{FLV}"); a(f"v_readfirstlane_b32 s{sT1}, v{FLV+1}")
a(f"s_cmp_lg_u32 s{sT0}, 0"); a("s_cbranch_scc1 L_fx")
lds_wait(F_XM, 1, vaddr=vFP)
a("s_branch L_fb")
a.label("L_fx")
for i in range(6):
    a(f"s_waitcnt lgkmcnt({13 - i})")
    for q in range(2): a(f"v_pk_add_f32 {v(pxr(i)+2*q,2)}, {v(pxr(i)+2*q,2)}, {v(ACC+16*(i//2)+4*(i%2)+2*q,2)}")
a(f"s_cmp_ge_u32 s{sT1}, 2"); a("s_cbranch_scc1 L_yok")
lds_wait(F_YL, 2, vaddr=vFA)
rd_a()
a.label("L_yok")
trace_at(27)
a("s_waitcnt lgkmcnt(6)")
a(f"v_sub_f32 v{G0_+2}, 1.0, v{G0_+1}"); a(f"v_sub_f32 v{G0_}, 1.0, v{G0_}"); a(f"v_sub_f32 v{G0_+4}, 1.0, v{G0_+4}")
for m in range(3):
    for t in range(2):
        i = 2 * m + t
        a(f"s_waitcnt lgkmcnt({5 - i + i + m})")
        for q in range(2): a(f"v_pk_fma_f32 {v(AA+4*i+2*q,2)}, {v(pxr(i)+2*q,2)}, {v(G0_+2*m,2)}, {v(AA+4*i+2*q,2)} op_sel_hi:[1,0,1]")
        pack(ACC + 2 * i, AA + 4 * i)
        a(f"ds_write_b64 v{vXW if t else vSW}, {v(ACC+2*i,2)} offset:{1024*m}")
    a(f"ds_read_b128 {v(24+4*m,4)}, v{vXR} offset:{1024*m}")
for m in range(3):
    a(f"s_waitcnt lgkmcnt({3*(2-m)})")
    a(f"buffer_store_dwordx4 {v(24+4*m,4)}, v{vOG}, s[{SRD_X}:{SRD_X+3}], s{sOO} offen" + ["", " sc1", " nt", " sc0 sc1", " sc0 sc1 nt"][O["osc"]])
    if m < 2: a(f"s_add_u32 s{sOO}, s{sOO}, {16*1280}")
a.label("L_pexit")
finish()
a.label("L_fslow")
a(f"s_mov_b32 s{sSPIN}, 0")
a.label("L_fs2")
a(f"ds_read2_b32 {v(AA+4,2)}, v{vFL} offset0:{F_EA//4} offset1:{F_LD//4}"); a("s_waitcnt lgkmcnt(0)")
a(f"v_add_u32 v{AA+4}, v{AA+4}, v{AA+5}"); a(f"v_readfirstlane_b32 s{sT1}, v{AA+4}"); a(f"s_cmp_ge_u32 s{sT1}, s84"); a("s_cbranch_scc1 L_fgo")
spin_tail("L_fs2", 8)
a("s_branch L_fgo")
for j in slow:
    a.label(f"L_ns{j}")
    refresh(); a("s_waitcnt lgkmcnt(0)")
    spin_tail(f"L_nb{j}")
    a(f"s_branch L_ng{j}")
a.label("L_end")
a("s_endpgm")
a.label("L_codeend")

lines, nn = hazard.run(a.lines)
hdr = open("/code/" + NAME + ".s.ref").read().split("; Override launch geometry")[0]
sys.stdout.write(hdr + header([f"@launch grid=(256,1,1) block=({64*NW},1,1) lds={LDS_BYTES}"]) + kernel_begin(KNAME) + "\n".join(lines) + "\n"
                 + kernel_desc(KNAME, NVGPR, 102, NVGPR).replace(".end_amdhsa_kernel\n.text\n", ".end_amdhsa_kernel\n"))
sys.stderr.write(f"instructions: {len(lines)}, nop states inserted: {nn}\n")
```

```python
import sys, re
from asmlib import *
import hazard
src, base, stride = sys.argv[1], int(sys.argv[2], 0), int(sys.argv[3], 0); mode = sys.argv[4] if len(sys.argv) > 4 else "map"
K = NAME + "_kernel"; t = open(src).read()
g = re.search(r"; @launch (grid=\S+ block=\S+ lds=\d+)", t).group(1); body = t[t.index(".text\n") + 6:]
a = Asm()
a("s_memrealtime s[20:21]"); a("s_cmp_lg_u32 s2, 0"); a("s_cbranch_scc1 P_end"); a("s_load_dwordx2 s[4:5], s[0:1], 96"); a("s_mov_b32 s9, 0"); a("s_waitcnt lgkmcnt(0)")
if mode == "ptr":
    a(f"s_lshr_b64 s[8:9], s[4:5], {stride}"); a("s_and_b32 s9, s8, 127")
else:
    for i in range(7 if mode == "map" else 1):
        a(f"s_mov_b32 s8, {base + i * stride}"); a("s_mov_b32 s16, -1")
        for r in range(3):
            a("s_memtime s[10:11]"); a("s_waitcnt lgkmcnt(0)"); a("s_load_dword s14, s[4:5], s8 glc"); a("s_waitcnt lgkmcnt(0)"); a("s_memtime s[12:13]"); a("s_waitcnt lgkmcnt(0)")
            a("s_sub_u32 s12, s12, s10"); a("s_min_u32 s16, s16, s12")
        if mode == "map": a("s_cmp_gt_u32 s16, 500"); a(f"s_cselect_b32 s15, {1 << i}, 0"); a("s_or_b32 s9, s9, s15")
        else: a("s_mul_i32 s9, s16, 205"); a("s_lshr_b32 s9, s9, 11"); a("s_min_u32 s9, s9, 127")
a("s_mul_i32 s9, s9, 200"); a("s_add_u32 s9, s9, s20"); a("s_add_u32 s9, s9, 2000")
a.label("P_spin"); a("s_memrealtime s[6:7]"); a("s_waitcnt lgkmcnt(0)"); a("s_sub_u32 s12, s6, s9"); a("s_cmp_lt_i32 s12, 0"); a("s_cbranch_scc1 P_spin"); a.label("P_end"); a("s_endpgm")
l1, _ = hazard.run(a.lines)
print(f"; @launch kernel={K} {g}\n; @launch kernel=rep_kernel grid=(1,1,1) block=(64,1,1) lds=0\n.amdgcn_target \"amdgcn-amd-amdhsa--gfx950\"\n.text\n"
      + body + "\n.text\n" + kernel_begin("rep_kernel") + "\n".join(l1) + "\n" + kernel_desc("rep_kernel", 8, 32, 8).replace(".end_amdhsa_kernel\n.text\n", ".end_amdhsa_kernel\n"))
```

```python
import sys, re
from asmlib import *
import hazard
src, role, waves, idx, stat = sys.argv[1], sys.argv[2], [int(x) for x in sys.argv[3].split(",")], int(sys.argv[4]), sys.argv[5]
TRACE = 0x1000000; C = 10
K = NAME + "_kernel"
t = open(src).read()
g = re.search(r"; @launch (grid=\S+ block=\S+ lds=\d+)", t).group(1)
body = t[t.index(".text\n") + 6:]
a = Asm()
a("s_cmp_lg_u32 s2, 0"); a("s_cbranch_scc1 P_end")
a("s_load_dwordx2 s[4:5], s[0:1], 96"); a("s_memrealtime s[6:7]")
a("v_mul_u32_u24 v1, 3072, v0"); a(f"v_add_u32 v1, {TRACE}, v1")
a("v_mov_b32 v2, 0"); a("v_mov_b32 v3, -1"); a("ds_write_b32 v2, v3"); a("ds_write_b32 v2, v2 offset:4"); a("ds_write_b32 v2, v2 offset:8"); a("ds_write_b32 v2, v2 offset:12")
a("s_waitcnt lgkmcnt(0)"); a("s_sub_u32 s8, s6, 0x4000")
a(f"global_load_dword v4, v1, s[4:5] offset:252")
for i, w in enumerate(waves): a(f"global_load_dword v{8+i}, v1, s[4:5] offset:{w*256+idx*4}")
a("s_barrier")
a("v_lshrrev_b32 v5, 3, v0"); a("v_bfe_u32 v6, v0, 1, 1"); a("v_add_u32 v5, v5, v6")
a("s_waitcnt vmcnt(0)")
a("v_subrev_u32 v4, s8, v4"); a("ds_min_u32 v2, v4")
a(f"v_cmp_{'gt' if role == 'G' else 'le'}_u32 s[10:11], 28, v5")
if len(sys.argv) > 6:
    a("v_and_b32 v6, 7, v0"); a(f"v_cmp_eq_u32 vcc, {int(sys.argv[6])}, v6"); a("s_and_b64 s[10:11], s[10:11], vcc")
a("v_mov_b32 v7, 1")
for i in range(len(waves)):
    a(f"v_subrev_u32 v{8+i}, s8, v{8+i}"); a(f"v_cmp_gt_u32 vcc, 0x4000, v{8+i}"); a("s_and_b64 exec, vcc, s[10:11]")
    a(f"ds_max_u32 v2, v{8+i} offset:4"); a(f"ds_add_u32 v2, v{8+i} offset:8"); a("ds_add_u32 v2, v7 offset:12"); a("s_mov_b64 exec, -1")
a("s_waitcnt lgkmcnt(0)"); a("s_barrier")
a("ds_read_b128 v[12:15], v2"); a("s_waitcnt lgkmcnt(0)")
if stat == "avg":
    a("v_cvt_f32_u32 v14, v14"); a("v_cvt_f32_u32 v15, v15"); a("v_rcp_f32 v15, v15"); a("v_mul_f32 v14, v14, v15"); a("v_cvt_f32_u32 v16, v12"); a("v_sub_f32 v14, v14, v16")
    a(f"v_mul_f32 v14, {float(C)}, v14".replace("10.0", "0x41200000")); a("v_cvt_u32_f32 v13, v14")
else:
    a("v_sub_u32 v13, v13, v12"); a(f"v_mul_u32_u24 v13, {C}, v13")
a("v_min_u32 v13, 30000, v13"); a("v_min_u32 v12, 0x4000, v12"); a("v_add_u32 v13, v13, v12")
a("v_readfirstlane_b32 s9, v13"); a("s_add_u32 s9, s9, s8"); a("s_add_u32 s9, s9, 4000")
a.label("P_spin")
a("s_memrealtime s[6:7]"); a("s_waitcnt lgkmcnt(0)"); a("s_sub_u32 s12, s6, s9"); a("s_cmp_lt_i32 s12, 0"); a("s_cbranch_scc1 P_spin")
a.label("P_end"); a("s_endpgm")
lines, _ = hazard.run(a.lines)
print(f"; @launch kernel={K} {g}\n; @launch kernel=rep_kernel grid=(1,1,1) block=(256,1,1) lds=64\n.amdgcn_target \"amdgcn-amd-amdhsa--gfx950\"\n.text\n" + body + "\n.text\n" + kernel_begin("rep_kernel") + "\n".join(lines) + "\n" + kernel_desc("rep_kernel", 32, 32, 32).replace(".end_amdhsa_kernel\n.text\n", ".end_amdhsa_kernel\n"))
```
